```python
import torch

def _softmax(x, axis=-1):
    return torch.softmax(x, dim=axis)
def _gelu(x):
    return torch.nn.functional.gelu(x, approximate="tanh")
def _silu(x):
    return torch.nn.functional.silu(x)
def _sigmoid(x):
    return torch.sigmoid(x)
def _layernorm(x, axis=-1, eps=1e-5):
    m = x.mean(dim=axis, keepdim=True)
    v = x.var(dim=axis, keepdim=True, unbiased=False)
    return (x - m) / torch.sqrt(v + eps)
def _scatter_add(tgt, idx, src, axis=0):
    return tgt.clone().index_add_(axis, idx, src)
def _segment_sum(src, seg, n):
    out = torch.zeros((n,) + src.shape[1:], dtype=src.dtype)
    return out.index_add_(0, seg, src)
def _pad(x, pw):
    flat = tuple(v for pair in reversed(pw) for v in pair)
    return torch.nn.functional.pad(x, flat)

kernel_name = 'sequential_preLN__spectral_gfnet__geglu_ffn__prompt'

def setup_inputs():

    _w = (lambda a: (lambda t: t.to(torch.bfloat16) if t.is_floating_point() else t)(torch.as_tensor(a)))
    def _A_setup():
        B, S, D = 1, 2048, 512
        Df = D // 2 + 1
        return {
            "x": _w((lambda *s: torch.randn(*s, dtype=torch.bfloat16) * 0.05)(B, S, D)),
            "w_r": _w((lambda *s: torch.randn(*s, dtype=torch.bfloat16) * 0.4)(S, Df) * 0.02),
            "w_i": _w((lambda *s: torch.randn(*s, dtype=torch.bfloat16) * 0.4)(S, Df) * 0.02),
        }
    _A_in = _A_setup()

    def _B_setup():
        B, S, D, F = 1, 2048, 512, 1376
        return {
            "x": _w((lambda *s: torch.randn(*s, dtype=torch.bfloat16) * 0.05)(B, S, D)),
            "w_gate": _w((lambda *s: torch.randn(*s, dtype=torch.bfloat16) * 0.05)(D, F)),
            "w_up": _w((lambda *s: torch.randn(*s, dtype=torch.bfloat16) * 0.05)(D, F)),
            "w_down": _w((lambda *s: torch.randn(*s, dtype=torch.bfloat16) * 0.05)(F, D)),
        }
    _B_in = _B_setup()

    return {
        "A_x": _A_in["x"],
        "A_w_r": _A_in["w_r"],
        "A_w_i": _A_in["w_i"],
        "B_x": _B_in["x"],
        "B_w_gate": _B_in["w_gate"],
        "B_w_up": _B_in["w_up"],
        "B_w_down": _B_in["w_down"],
    }

def reference(A_x, A_w_r, A_w_i, B_x, B_w_gate, B_w_up, B_w_down):
    def _A_ref(x, w_r, w_i):
        B, S, D = x.shape
        X = (lambda x, axes=(-2,-1): torch.fft.rfft2(x.float(), dim=axes))(x, axes=(-2, -1))
        W = w_r + 1j * w_i
        X = X * W
        y = (lambda x, s, axes=(-2,-1): torch.fft.irfft2(x, s=s, dim=axes).to(torch.bfloat16))(X, (S, D), axes=(-2, -1))
        return y

    def _B_ref(x, w_gate, w_up, w_down):
        return (_gelu(x @ w_gate) * (x @ w_up)) @ w_down

    x = A_x
    h = x + _A_ref(_layernorm(x, axis=-1), A_w_r, A_w_i)
    h2 = h + _B_ref(_layernorm(h, axis=-1), B_w_gate, B_w_up, B_w_down)
    return h2
```

```python
import math
class A:
    def __init__(s): s.L=[]
    def __call__(s,x): s.L.append("    "+x)
    def lab(s,x): s.L.append(x+":")
    def nop(s,n=0): s(f"s_nop {n}")
    def txt(s): return "\n".join(s.L)+"\n"

def srd(a,d,plo,off,nbytes):
    if off:
        a(f"s_add_u32 s{d}, s{plo}, {hex(off)}"); a(f"s_addc_u32 s{d+1}, s{plo+1}, 0")
    else:
        a(f"s_mov_b32 s{d}, s{plo}"); a(f"s_mov_b32 s{d+1}, s{plo+1}")
    a(f"s_and_b32 s{d+1}, s{d+1}, 0xffff")
    a(f"s_mov_b32 s{d+2}, {hex(nbytes)}"); a(f"s_mov_b32 s{d+3}, 0x20000")

def load_ptrs(a):
    a("s_load_dwordx16 s[16:31], s[0:1], 0")
    a("s_load_dwordx4 s[32:35], s[0:1], 64")
    a("s_waitcnt lgkmcnt(0)")

def muli(a,d,x,s):
    if s<0: a(f"v_mov_b32 v{d[0]}, v{x[1]}"); a(f"v_sub_f32 v{d[1]}, 0, v{x[0]}")
    else:   a(f"v_sub_f32 v{d[0]}, 0, v{x[1]}"); a(f"v_mov_b32 v{d[1]}, v{x[0]}")
def cadd(a,d,x,y): a(f"v_add_f32 v{d[0]}, v{x[0]}, v{y[0]}"); a(f"v_add_f32 v{d[1]}, v{x[1]}, v{y[1]}")
def csub(a,d,x,y): a(f"v_sub_f32 v{d[0]}, v{x[0]}, v{y[0]}"); a(f"v_sub_f32 v{d[1]}, v{x[1]}, v{y[1]}")

def dft8(a,X,T,s):
    Aa=T[0:8]; E=T[8:12]; O=T[12:16]
    cadd(a,Aa[0],X[0],X[4]); csub(a,Aa[1],X[0],X[4]); cadd(a,Aa[2],X[2],X[6]); csub(a,Aa[3],X[2],X[6])
    cadd(a,Aa[4],X[1],X[5]); csub(a,Aa[5],X[1],X[5]); cadd(a,Aa[6],X[3],X[7]); csub(a,Aa[7],X[3],X[7])
    cadd(a,E[0],Aa[0],Aa[2]); csub(a,E[2],Aa[0],Aa[2])
    muli(a,X[0],Aa[3],s); cadd(a,E[1],Aa[1],X[0]); csub(a,E[3],Aa[1],X[0])
    cadd(a,O[0],Aa[4],Aa[6]); csub(a,O[2],Aa[4],Aa[6])
    muli(a,X[0],Aa[7],s); cadd(a,O[1],Aa[5],X[0]); csub(a,O[3],Aa[5],X[0])
    r,m=O[1]; t=X[1]
    op = "v_sub_f32" if s>0 else "v_add_f32"; op2="v_add_f32" if s>0 else "v_sub_f32"
    a(f"{op} v{t[0]}, v{r}, v{m}"); a(f"{op2} v{t[1]}, v{m}, v{r}")
    a(f"v_mul_f32 v{O[1][0]}, 0x3f3504f3, v{t[0]}"); a(f"v_mul_f32 v{O[1][1]}, 0x3f3504f3, v{t[1]}")
    r,m=O[3]
    a(f"{op2} v{t[0]}, v{r}, v{m}"); a(f"{op} v{t[1]}, v{m}, v{r}")
    a(f"v_mul_f32 v{O[3][0]}, 0xbf3504f3, v{t[0]}"); a(f"v_mul_f32 v{O[3][1]}, 0xbf3504f3, v{t[1]}")
    muli(a,X[2],O[2],s)
    a(f"v_mov_b32 v{O[2][0]}, v{X[2][0]}"); a(f"v_mov_b32 v{O[2][1]}, v{X[2][1]}")
    for k in range(4):
        cadd(a,X[k],E[k],O[k]); csub(a,X[k+4],E[k],O[k])

def dft4(a,X,T,s):
    p,q,r,t=T[0:4]
    cadd(a,p,X[0],X[2]); csub(a,q,X[0],X[2]); cadd(a,r,X[1],X[3]); csub(a,t,X[1],X[3])
    muli(a,X[1],t,s)
    cadd(a,X[0],p,r); csub(a,X[2],p,r); csub(a,X[3],q,X[1]); cadd(a,X[1],q,X[1])

def twiddle(a,X,R,kreg,denom,s,tv):
    t,c,sn,u0,u1=tv
    inv=1.0/denom
    import struct
    lit=hex(struct.unpack('<I',struct.pack('<f',inv))[0])
    for r in range(1,R):
        a(f"v_mul_u32_u24 v{t}, {r}, v{kreg}"); a(f"v_cvt_f32_u32 v{t}, v{t}"); a(f"v_mul_f32 v{t}, {lit}, v{t}")
        a(f"v_cos_f32 v{c}, v{t}"); a(f"v_sin_f32 v{sn}, v{t}"); a.nop(0)
        if s<0: a(f"v_sub_f32 v{sn}, 0, v{sn}")
        xr,xi=X[r]
        a(f"v_mul_f32 v{u0}, v{xi}, v{sn}"); a(f"v_mul_f32 v{u1}, v{xi}, v{c}")
        a(f"v_fma_f32 v{xi}, v{xr}, v{sn}, v{u1}"); a(f"v_fma_f32 v{xr}, v{xr}, v{c}, -v{u0}")

def bfr(a,d,x):
    a(f"v_cvt_pk_bf16_f32 v{d}, v{x}, v{x}"); a(f"v_lshlrev_b32 v{d}, 16, v{d}")
```

```python
import sys; sys.path.insert(0,'gen')
from lib import *
NAME="sequential_preLN__spectral_gfnet__geglu_ffn__prompt"
OFF_XT=0; OFF_H=0x500000; OFF_LN=0x700000; OFF_ACT=0x900000; OFF_WG=0x1000000; OFF_WU=0x1200000; OFF_WD=0x1400000
X=[(16+2*i,17+2*i) for i in range(8)]
T=[(32+2*i,33+2*i) for i in range(16)]
TV=[64,65,66,67,68]

def reduce_sum(a,regs):
    for m in (32,16,8,4,2,1):
        a(f"v_xor_b32 v70, {m}, v1"); a("v_lshlrev_b32 v70, 2, v70")
        for i,r in enumerate(regs): a(f"ds_bpermute_b32 v{71+i}, v70, v{r}")
        a("s_waitcnt lgkmcnt(0)")
        for i,r in enumerate(regs): a(f"v_add_f32 v{r}, v{r}, v{71+i}")

def ln2rows(a,RA,RB):
    for R,acc in ((RA,76),(RB,77)):
        a(f"v_add_f32 v{acc}, v{R[0]}, v{R[1]}")
        for r in R[2:]: a(f"v_add_f32 v{acc}, v{acc}, v{r}")
    reduce_sum(a,[76,77])
    a("v_mul_f32 v76, 0x3b000000, v76"); a("v_mul_f32 v77, 0x3b000000, v77")
    for R,mean,acc in ((RA,76,78),(RB,77,79)):
        a(f"v_mov_b32 v{acc}, 0")
        for r in R:
            a(f"v_sub_f32 v70, v{r}, v{mean}"); a(f"v_fmac_f32 v{acc}, v70, v70")
    reduce_sum(a,[78,79])
    for R,mean,acc in ((RA,76,78),(RB,77,79)):
        a(f"v_mul_f32 v{acc}, 0x3b000000, v{acc}"); bfr(a,acc,acc)
        a(f"v_add_f32 v{acc}, 0x3727c5ac, v{acc}"); bfr(a,acc,acc)
        a(f"v_sqrt_f32 v{acc}, v{acc}"); a.nop(0); bfr(a,acc,acc)
        a(f"v_rcp_f32 v{acc}, v{acc}"); bfr(a,mean,mean)
        for r in R:
            a(f"v_sub_f32 v{r}, v{r}, v{mean}"); bfr(a,r,r); a(f"v_mul_f32 v{r}, v{r}, v{acc}"); bfr(a,r,r)

def fft512(a,s):
    dft8(a,X,T,s)
    a("v_lshlrev_b32 v3, 3, v1"); a("v_add_u32 v3, v3, v2")
    for k0 in range(8): a(f"ds_write_b64 v3, v[{X[k0][0]}:{X[k0][1]}] offset:{k0*512}")
    a("v_lshrrev_b32 v4, 3, v1"); a("v_and_b32 v5, 7, v1")
    a("v_lshlrev_b32 v6, 9, v4"); a("v_lshlrev_b32 v7, 3, v5"); a("v_add_u32 v6, v6, v7"); a("v_add_u32 v6, v6, v2")
    a("s_waitcnt lgkmcnt(0)")
    for n1 in range(8): a(f"ds_read_b64 v[{X[n1][0]}:{X[n1][1]}], v6 offset:{n1*64}")
    a("s_waitcnt lgkmcnt(0)")
    twiddle(a,X,8,4,64,s,TV); dft8(a,X,T,s)
    for k1 in range(8): a(f"ds_write_b64 v6, v[{X[k1][0]}:{X[k1][1]}] offset:{k1*64}")
    a("v_lshlrev_b32 v6, 6, v1"); a("v_add_u32 v6, v6, v2")
    a("s_waitcnt lgkmcnt(0)")
    for n0 in range(8): a(f"ds_read_b64 v[{X[n0][0]}:{X[n0][1]}], v6 offset:{n0*8}")
    a("v_lshlrev_b32 v7, 3, v5"); a("v_add_u32 v7, v7, v4")
    a("s_waitcnt lgkmcnt(0)")
    twiddle(a,X,8,7,512,s,TV); dft8(a,X,T,s)

def K1():
    a=A(); load_ptrs(a)
    a("s_cmp_ge_u32 s2, 256"); a("s_cbranch_scc1 K1_TR")
    srd(a,4,16,0,2048*1024); srd(a,8,34,OFF_XT,257*2048*8)
    a("v_and_b32 v1, 63, v0"); a("v_lshrrev_b32 v8, 6, v0")
    a("v_mul_u32_u24 v2, 4608, v8")
    a("s_lshl_b32 s3, s2, 2"); a("v_add_u32 v8, s3, v8")
    a("v_lshlrev_b32 v9, 11, v8"); a("v_lshlrev_b32 v10, 1, v1"); a("v_add_u32 v9, v9, v10")
    for j in range(8):
        a(f"buffer_load_ushort v{X[j][0]}, v9, s[4:7], 0 offen offset:{128*j}")
        a(f"buffer_load_ushort v{X[j][1]}, v9, s[4:7], 0 offen offset:{1024+128*j}")
    a("s_waitcnt vmcnt(0)")
    for j in range(8):
        a(f"v_lshlrev_b32 v{X[j][0]}, 16, v{X[j][0]}"); a(f"v_lshlrev_b32 v{X[j][1]}, 16, v{X[j][1]}")
    ln2rows(a,[X[j][0] for j in range(8)],[X[j][1] for j in range(8)])
    fft512(a,-1)
    a("v_lshlrev_b32 v6, 3, v7"); a("v_add_u32 v6, v6, v2")
    for k2 in range(8): a(f"ds_write_b64 v6, v[{X[k2][0]}:{X[k2][1]}] offset:{k2*512}")
    a("s_waitcnt lgkmcnt(0)")
    a("v_lshlrev_b32 v11, 4, v8")
    for j in range(5):
        a(f"v_add_u32 v4, {64*j}, v1"); a("v_sub_u32 v5, 512, v4"); a("v_and_b32 v5, 511, v5")
        a("v_lshlrev_b32 v6, 3, v4"); a("v_add_u32 v6, v6, v2"); a("v_lshlrev_b32 v7, 3, v5"); a("v_add_u32 v7, v7, v2")
        a("ds_read_b64 v[16:17], v6"); a("ds_read_b64 v[18:19], v7"); a("s_waitcnt lgkmcnt(0)")
        a("v_add_f32 v20, v16, v18"); a("v_sub_f32 v21, v17, v19"); a("v_add_f32 v22, v17, v19"); a("v_sub_f32 v23, v18, v16")
        for r in range(20,24): a(f"v_mul_f32 v{r}, 0.5, v{r}")
        a("v_lshlrev_b32 v4, 14, v4"); a("v_add_u32 v4, v4, v11")
        if j==4:
            a("v_cmp_eq_u32 vcc, 0, v1"); a("s_and_saveexec_b64 s[12:13], vcc")
        a("buffer_store_dwordx4 v[20:23], v4, s[8:11], 0 offen")
        if j==4: a("s_mov_b64 exec, s[12:13]")
    a("s_endpgm")
    a.lab("K1_TR")
    a("s_sub_u32 s3, s2, 256"); a("s_cmp_ge_u32 s3, 132"); a("s_cbranch_scc1 K1_END")
    a("v_and_b32 v1, 63, v0"); a("v_lshrrev_b32 v8, 6, v0"); a("s_lshl_b32 s3, s3, 2"); a("v_add_u32 v8, s3, v8")
    a.nop(0); a("v_readfirstlane_b32 s3, v8")
    a("s_cmp_ge_u32 s3, 352"); a("s_cbranch_scc1 K1_TD")
    a("s_cmp_ge_u32 s3, 176"); a("s_cbranch_scc1 K1_TU")
    srd(a,4,24,0,512*1376*2); srd(a,8,34,OFF_WG,1376*512*2); a("s_branch K1_TGU")
    a.lab("K1_TU"); a("s_sub_u32 s3, s3, 176"); srd(a,4,26,0,512*1376*2); srd(a,8,34,OFF_WU,1376*512*2)
    a.lab("K1_TGU")
    a("s_lshr_b32 s14, s3, 3"); a("s_and_b32 s15, s3, 7"); a("s_lshl_b32 s14, s14, 6"); a("s_lshl_b32 s15, s15, 6")
    a("s_mov_b32 s36, 2752"); a("s_mov_b32 s37, 1024"); a("s_mov_b32 s38, 1376"); a("s_branch K1_TC")
    a.lab("K1_TD"); a("s_sub_u32 s3, s3, 352"); srd(a,4,28,0,512*1376*2); srd(a,8,34,OFF_WD,1376*512*2)
    a("s_and_b32 s14, s3, 7"); a("s_lshr_b32 s15, s3, 3"); a("s_lshl_b32 s14, s14, 6"); a("s_lshl_b32 s15, s15, 6")
    a("s_mov_b32 s36, 1024"); a("s_mov_b32 s37, 2752"); a("s_mov_b32 s38, 512")
    a.lab("K1_TC")
    a("v_add_u32 v2, s14, v1"); a("v_cmp_gt_u32 vcc, s38, v2"); a("s_and_saveexec_b64 s[12:13], vcc")
    a("s_cbranch_execz K1_END")
    for kb in range(8):
        a(f"s_add_u32 s39, s15, {kb*8}"); a("s_cmp_ge_u32 s39, 1376"); a("s_cbranch_scc1 K1_END"); a("s_mul_i32 s40, s39, s36"); a("v_lshlrev_b32 v3, 1, v2"); a("v_add_u32 v3, s40, v3")
        for i in range(8):
            a(f"buffer_load_ushort v{16+i}, v3, s[4:7], 0 offen"); a("v_add_u32 v3, s36, v3")
        a("s_waitcnt vmcnt(0)")
        for i in range(4): a(f"v_lshl_or_b32 v{24+i}, v{17+2*i}, 16, v{16+2*i}")
        a("v_mul_lo_u32 v3, v2, s37"); a("s_lshl_b32 s40, s39, 1"); a("v_add_u32 v3, s40, v3")
        a("buffer_store_dwordx4 v[24:27], v3, s[8:11], 0 offen")
    a.lab("K1_END"); a("s_endpgm")
    return a

def K2():
    a=A(); load_ptrs(a)
    a("s_cmp_ge_u32 s2, 257"); a("s_cbranch_scc1 K2_END")
    srd(a,4,34,OFF_XT,257*2048*8); srd(a,8,18,0,2048*257*2); srd(a,12,20,0,2048*257*2)
    a("s_lshl_b32 s3, s2, 14"); a("v_lshlrev_b32 v9, 3, v0"); a("v_add_u32 v9, s3, v9")
    for r in range(8): a(f"buffer_load_dwordx2 v[{X[r][0]}:{X[r][1]}], v9, s[4:7], 0 offen offset:{0}"); a("v_add_u32 v9, 2048, v9")
    a("s_waitcnt vmcnt(0)")
    def stages(s,first):
        buf=0; Ns=1
        for R in (8,8,8):
            if Ns>1:
                a("s_barrier")
                a(f"v_lshlrev_b32 v3, 3, v0");
                for r in range(8): a(f"ds_read_b64 v[{X[r][0]}:{X[r][1]}], v3 offset:{(1-buf)*16384+r*2048}")
                a(f"v_and_b32 v4, {Ns-1}, v0"); a("s_waitcnt lgkmcnt(0)")
                twiddle(a,X,8,4,Ns*8,s,TV)
            dft8(a,X,T,s)
            lg=Ns.bit_length()-1
            a(f"v_lshrrev_b32 v3, {lg}, v0"); a(f"v_lshlrev_b32 v3, {lg+3}, v3"); a(f"v_and_b32 v4, {Ns-1}, v0"); a("v_add_u32 v3, v3, v4"); a("v_lshlrev_b32 v3, 3, v3")
            for r in range(8): a(f"ds_write_b64 v3, v[{X[r][0]}:{X[r][1]}] offset:{buf*16384+r*Ns*8}")
            a("s_waitcnt lgkmcnt(0)")
            buf^=1; Ns*=8
        a("s_barrier")
        a("v_lshlrev_b32 v3, 3, v0")
        for q in range(8): a(f"ds_read_b64 v[{X[q][0]}:{X[q][1]}], v3 offset:{(1-buf)*16384+q*2048}")
        a("s_waitcnt lgkmcnt(0)")
        for h in range(2):
            Y=[X[h+2*r] for r in range(4)]
            a(f"v_add_u32 v4, {256*h}, v0"); twiddle(a,Y,4,4,2048,s,TV); dft4(a,Y,T,s)
    stages(-1,True)
    a("v_mul_u32_u24 v5, 514, v0"); a("s_lshl_b32 s3, s2, 1"); a("v_add_u32 v5, s3, v5")
    for q in range(8):
        a(f"buffer_load_ushort v{72+2*q}, v5, s[8:11], 0 offen"); a(f"buffer_load_ushort v{73+2*q}, v5, s[12:15], 0 offen"); a(f"v_add_u32 v5, {256*514}, v5")
    a("s_waitcnt vmcnt(0)")
    for q in range(8):
        c,sn=72+2*q,73+2*q; xr,xi=X[q]
        a(f"v_lshlrev_b32 v{c}, 16, v{c}"); a(f"v_lshlrev_b32 v{sn}, 16, v{sn}")
        a(f"v_mul_f32 v67, v{xi}, v{sn}"); a(f"v_mul_f32 v68, v{xi}, v{c}")
        a(f"v_fma_f32 v{xi}, v{xr}, v{sn}, v68"); a(f"v_fma_f32 v{xr}, v{xr}, v{c}, -v67")
    a("s_barrier")
    stages(1,False)
    a("s_lshl_b32 s3, s2, 14"); a("v_lshlrev_b32 v9, 3, v0"); a("v_add_u32 v9, s3, v9")
    for q in range(8):
        a(f"v_mul_f32 v{X[q][0]}, 0x35800000, v{X[q][0]}"); a(f"v_mul_f32 v{X[q][1]}, 0x35800000, v{X[q][1]}")
        a(f"buffer_store_dwordx2 v[{X[q][0]}:{X[q][1]}], v9, s[4:7], 0 offen"); a("v_add_u32 v9, 2048, v9")
    a.lab("K2_END"); a("s_endpgm")
    return a

def K3():
    a=A(); load_ptrs(a)
    a("s_cmp_ge_u32 s2, 256"); a("s_cbranch_scc1 K3_END")
    srd(a,4,16,0,2048*1024); srd(a,8,34,OFF_XT,257*2048*8); srd(a,12,34,OFF_H,2048*1024); srd(a,40,34,OFF_LN,2048*1024)
    a("v_and_b32 v1, 63, v0"); a("v_lshrrev_b32 v8, 6, v0"); a("v_mul_u32_u24 v2, 4608, v8")
    a("s_lshl_b32 s3, s2, 2"); a("v_add_u32 v8, s3, v8"); a("v_lshlrev_b32 v11, 4, v8")
    for j in range(5):
        a(f"v_add_u32 v4, {64*j}, v1"); a("v_lshlrev_b32 v5, 14, v4"); a("v_add_u32 v5, v5, v11")
        a("buffer_load_dwordx4 v[16:19], v5, s[8:11], 0 offen"); a("s_waitcnt vmcnt(0)")
        a("v_sub_f32 v20, v16, v19"); a("v_add_f32 v21, v17, v18"); a("v_add_f32 v22, v16, v19"); a("v_sub_f32 v23, v18, v17")
        a("v_lshlrev_b32 v6, 3, v4"); a("v_add_u32 v6, v6, v2"); a("v_sub_u32 v7, 512, v4"); a("v_lshlrev_b32 v7, 3, v7"); a("v_add_u32 v7, v7, v2")
        if j==0 or j==4:
            a("v_and_b32 v5, 255, v4"); a("v_cmp_eq_u32 vcc, 0, v5"); a.nop(1)
            a("v_cndmask_b32 v20, v20, v16, vcc"); a("v_cndmask_b32 v21, v21, v18, vcc")
            if j==4: a("s_and_saveexec_b64 s[36:37], vcc")
            else: a("s_mov_b64 s[38:39], vcc")
        a("ds_write_b64 v6, v[20:21]")
        if j==4: a("s_mov_b64 exec, s[36:37]")
        else:
            if j==0: a("s_mov_b64 s[36:37], exec"); a("s_andn2_b64 exec, exec, s[38:39]")
            a("ds_write_b64 v7, v[22:23]")
            if j==0: a("s_mov_b64 exec, s[36:37]")
    a("s_waitcnt lgkmcnt(0)")
    a("v_lshlrev_b32 v3, 3, v1"); a("v_add_u32 v3, v3, v2")
    for j in range(8): a(f"ds_read_b64 v[{X[j][0]}:{X[j][1]}], v3 offset:{512*j}")
    a("s_waitcnt lgkmcnt(0)")
    fft512(a,1)
    a("v_lshlrev_b32 v9, 11, v8"); a("v_lshlrev_b32 v10, 1, v7"); a("v_add_u32 v9, v9, v10")
    for j in range(8):
        a(f"buffer_load_ushort v{T[j][0]}, v9, s[4:7], 0 offen offset:{128*j}"); a(f"buffer_load_ushort v{T[j][1]}, v9, s[4:7], 0 offen offset:{1024+128*j}")
    a("s_waitcnt vmcnt(0)")
    for j in range(8):
        for c in range(2):
            x=X[j][c]; t=T[j][c]
            bfr(a,x,x); a(f"v_lshlrev_b32 v{t}, 16, v{t}"); a(f"v_add_f32 v{x}, v{x}, v{t}"); a(f"v_cvt_pk_bf16_f32 v{x}, v{x}, v{x}")
            a(f"buffer_store_short v{x}, v9, s[12:15], 0 offen offset:{1024*c+128*j}"); a(f"v_lshlrev_b32 v{T[j][c]}, 16, v{x}")
    ln2rows(a,[T[j][0] for j in range(8)],[T[j][1] for j in range(8)])
    for j in range(8):
        for c in range(2):
            t=T[j][c]; a(f"v_lshrrev_b32 v{t}, 16, v{t}"); a(f"buffer_store_short v{t}, v9, s[40:43], 0 offen offset:{1024*c+128*j}")
    a.lab("K3_END"); a("s_endpgm")
    return a

def gemm(lab,which):
    a=A(); load_ptrs(a)
    if which==4:
        a("s_and_b32 s3, s2, 15"); a("s_lshr_b32 s36, s2, 4"); a("s_cmp_ge_u32 s36, 22"); a(f"s_cbranch_scc1 {lab}_END")
        srd(a,4,34,OFF_LN,2048*1024); srd(a,8,34,OFF_WG,1376*1024); srd(a,12,34,OFF_WU,1376*1024); srd(a,40,34,OFF_ACT,2048*2752)
        KS,ldA,ldB=512,1024,1024
        a("s_lshl_b32 s3, s3, 7"); a("s_lshl_b32 s36, s36, 6")
    else:
        a("s_and_b32 s3, s2, 15"); a("s_lshr_b32 s36, s2, 4"); a("s_cmp_ge_u32 s36, 8"); a(f"s_cbranch_scc1 {lab}_END")
        srd(a,4,34,OFF_ACT,2048*2752); srd(a,8,34,OFF_WD,512*2752); srd(a,12,34,OFF_H,2048*1024); srd(a,40,30,0,2048*1024)
        KS,ldA,ldB=1376,2752,2752
        a("s_lshl_b32 s3, s3, 7"); a("s_lshl_b32 s36, s36, 6")
    a("v_and_b32 v1, 63, v0"); a("v_lshrrev_b32 v2, 6, v0"); a("v_and_b32 v3, 1, v2"); a("v_lshrrev_b32 v4, 1, v2")
    a("v_lshlrev_b32 v3, 6, v3"); a("v_add_u32 v3, s3, v3")
    a("v_lshlrev_b32 v4, 5, v4"); a("v_add_u32 v4, s36, v4")
    a("v_and_b32 v5, 31, v1"); a("v_lshrrev_b32 v6, 5, v1"); a("v_lshlrev_b32 v6, 4, v6")
    a("v_add_u32 v7, v3, v5"); a(f"v_mul_u32_u24 v7, {ldA}, v7"); a("v_add_u32 v7, v7, v6"); a(f"v_add_u32 v8, {32*ldA}, v7")
    a("v_add_u32 v9, v4, v5"); a(f"v_mul_u32_u24 v9, {ldB}, v9"); a("v_add_u32 v9, v9, v6")
    for r in range(64,128): a(f"v_mov_b32 v{r}, 0")
    a("s_mov_b32 s37, 0"); a.lab(f"{lab}_L")
    a("buffer_load_dwordx4 v[16:19], v7, s[4:7], s37 offen"); a("buffer_load_dwordx4 v[20:23], v8, s[4:7], s37 offen")
    a("buffer_load_dwordx4 v[24:27], v9, s[8:11], s37 offen")
    if which==4: a("buffer_load_dwordx4 v[28:31], v9, s[12:15], s37 offen")
    a("s_waitcnt vmcnt(0)")
    a("v_mfma_f32_32x32x16_bf16 v[64:79], v[16:19], v[24:27], v[64:79]"); a("v_mfma_f32_32x32x16_bf16 v[80:95], v[20:23], v[24:27], v[80:95]")
    if which==4:
        a("v_mfma_f32_32x32x16_bf16 v[96:111], v[16:19], v[28:31], v[96:111]"); a("v_mfma_f32_32x32x16_bf16 v[112:127], v[20:23], v[28:31], v[112:127]")
    a("s_add_u32 s37, s37, 32"); a(f"s_cmp_lt_u32 s37, {KS*2}"); a(f"s_cbranch_scc1 {lab}_L")
    a.nop(15); a.nop(15)
    a("v_add_u32 v10, v4, v5")
    a("v_lshrrev_b32 v6, 5, v1"); a("v_lshlrev_b32 v6, 2, v6"); a("v_add_u32 v6, v6, v3")
    if which==4: a("v_cmp_gt_u32 vcc, 1376, v10"); a("s_and_saveexec_b64 s[38:39], vcc")
    for i in range(2):
        for r in range(16):
            row=32*i+(r>>2)*8+(r&3); g=64+16*i+r; u=96+16*i+r
            a(f"v_add_u32 v11, {row}, v6")
            if which==4:
                a("v_mul_u32_u24 v11, 2752, v11"); a("v_lshlrev_b32 v12, 1, v10"); a("v_add_u32 v11, v11, v12")
                bfr(a,g,g); bfr(a,u,u)
                a(f"v_mul_f32 v13, v{g}, v{g}"); a("v_mul_f32 v13, 0x3d372713, v13"); a(f"v_fma_f32 v13, v13, v{g}, v{g}")
                a("v_mul_f32 v13, 0x40135761, v13"); a("v_exp_f32 v13, v13"); a.nop(0); a("v_add_f32 v13, 1.0, v13"); a("v_rcp_f32 v13, v13"); a.nop(0)
                a(f"v_fma_f32 v13, -v13, v{g}, v{g}"); bfr(a,13,13); a(f"v_mul_f32 v13, v13, v{u}"); a("v_cvt_pk_bf16_f32 v13, v13, v13")
                a("buffer_store_short v13, v11, s[40:43], 0 offen")
            else:
                a("v_lshlrev_b32 v11, 10, v11"); a("v_lshlrev_b32 v12, 1, v10"); a("v_add_u32 v11, v11, v12")
                a("buffer_load_ushort v13, v11, s[12:15], 0 offen"); bfr(a,g,g); a("s_waitcnt vmcnt(0)"); a("v_lshlrev_b32 v13, 16, v13")
                a(f"v_add_f32 v13, v13, v{g}"); a("v_cvt_pk_bf16_f32 v13, v13, v13"); a("buffer_store_short v13, v11, s[40:43], 0 offen")
    a.lab(f"{lab}_END"); a("s_endpgm")
    return a

ks=[("k1_kernel",K1(),(256+132,1,1),18432,80),("k2_kernel",K2(),(257,1,1),32768,96),("k3_kernel",K3(),(256,1,1),18432,80),
    ("k4_kernel",gemm("K4",4),(352,1,1),0,128),("k5_kernel",gemm("K5",5),(128,1,1),0,128)]
out="; generated\n"
for n,_,g,l,_ in ks: out+=f"; @launch kernel={n} grid=({g[0]},{g[1]},{g[2]}) block=(256,1,1) lds={l}\n"
out+='.amdgcn_target "amdgcn-amd-amdhsa--gfx950"\n.text\n'
for n,k,_,_,_ in ks: out+=f".globl {n}\n.p2align 8\n.type {n},@function\n{n}:\n"+k.txt()
out+='.section .rodata,"a"\n'
for n,_,_,_,nv in ks:
    out+=f".p2align 6\n.amdhsa_kernel {n}\n  .amdhsa_next_free_vgpr {nv}\n  .amdhsa_next_free_sgpr 48\n  .amdhsa_accum_offset {nv}\n  .amdhsa_group_segment_fixed_size 0\n  .amdhsa_kernarg_size 80\n  .amdhsa_user_sgpr_count 2\n  .amdhsa_user_sgpr_kernarg_segment_ptr 1\n  .amdhsa_system_sgpr_workgroup_id_x 1\n.end_amdhsa_kernel\n"
open(f"cdna_kernels/{NAME}.s","w").write(out)
```

```python
import sys; sys.path.insert(0,'gen')
from lib import *
NAME="sequential_preLN__spectral_gfnet__geglu_ffn__prompt"
OFF_XT=0; OFF_H=0x500000; OFF_LN=0x700000; OFF_ACT=0x900000; OFF_WG=0x1000000; OFF_WU=0x1200000; OFF_WD=0x1400000
X=[(16+2*i,17+2*i) for i in range(8)]
T=[(32+2*i,33+2*i) for i in range(16)]
TV=[64,65,66,67,68]

def reduce_sum(a,regs):
    for m in (32,16,8,4,2,1):
        a(f"v_xor_b32 v70, {m}, v1"); a("v_lshlrev_b32 v70, 2, v70")
        for i,r in enumerate(regs): a(f"ds_bpermute_b32 v{71+i}, v70, v{r}")
        a("s_waitcnt lgkmcnt(0)")
        for i,r in enumerate(regs): a(f"v_add_f32 v{r}, v{r}, v{71+i}")

def ln2rows(a,RA,RB):
    for R,acc in ((RA,76),(RB,77)):
        a(f"v_add_f32 v{acc}, v{R[0]}, v{R[1]}")
        for r in R[2:]: a(f"v_add_f32 v{acc}, v{acc}, v{r}")
    reduce_sum(a,[76,77])
    a("v_mul_f32 v76, 0x3b000000, v76"); a("v_mul_f32 v77, 0x3b000000, v77")
    for R,mean,acc in ((RA,76,78),(RB,77,79)):
        a(f"v_mov_b32 v{acc}, 0")
        for r in R:
            a(f"v_sub_f32 v70, v{r}, v{mean}"); a(f"v_fmac_f32 v{acc}, v70, v70")
    reduce_sum(a,[78,79])
    for R,mean,acc in ((RA,76,78),(RB,77,79)):
        a(f"v_mul_f32 v{acc}, 0x3b000000, v{acc}"); bfr(a,acc,acc)
        a(f"v_add_f32 v{acc}, 0x3727c5ac, v{acc}"); bfr(a,acc,acc)
        a(f"v_sqrt_f32 v{acc}, v{acc}"); a.nop(0); bfr(a,acc,acc)
        a(f"v_rcp_f32 v{acc}, v{acc}"); bfr(a,mean,mean)
        for r in R:
            a(f"v_sub_f32 v{r}, v{r}, v{mean}"); bfr(a,r,r); a(f"v_mul_f32 v{r}, v{r}, v{acc}"); bfr(a,r,r)

def fft512(a,s):
    dft8(a,X,T,s)
    a("v_lshlrev_b32 v3, 3, v1"); a("v_add_u32 v3, v3, v2")
    for k0 in range(8): a(f"ds_write_b64 v3, v[{X[k0][0]}:{X[k0][1]}] offset:{k0*512}")
    a("v_lshrrev_b32 v4, 3, v1"); a("v_and_b32 v5, 7, v1")
    a("v_lshlrev_b32 v6, 9, v4"); a("v_lshlrev_b32 v7, 3, v5"); a("v_add_u32 v6, v6, v7"); a("v_add_u32 v6, v6, v2")
    a("s_waitcnt lgkmcnt(0)")
    for n1 in range(8): a(f"ds_read_b64 v[{X[n1][0]}:{X[n1][1]}], v6 offset:{n1*64}")
    a("s_waitcnt lgkmcnt(0)")
    twiddle(a,X,8,4,64,s,TV); dft8(a,X,T,s)
    for k1 in range(8): a(f"ds_write_b64 v6, v[{X[k1][0]}:{X[k1][1]}] offset:{k1*64}")
    a("v_lshlrev_b32 v6, 6, v1"); a("v_add_u32 v6, v6, v2")
    a("s_waitcnt lgkmcnt(0)")
    for n0 in range(8): a(f"ds_read_b64 v[{X[n0][0]}:{X[n0][1]}], v6 offset:{n0*8}")
    a("v_lshlrev_b32 v7, 3, v5"); a("v_add_u32 v7, v7, v4")
    a("s_waitcnt lgkmcnt(0)")
    twiddle(a,X,8,7,512,s,TV); dft8(a,X,T,s)

def K1():
    a=A(); load_ptrs(a)
    a("s_cmp_ge_u32 s2, 256"); a("s_cbranch_scc1 K1_TR")
    srd(a,4,16,0,2048*1024); srd(a,8,34,OFF_XT,257*2048*8)
    a("v_and_b32 v1, 63, v0"); a("v_lshrrev_b32 v8, 6, v0")
    a("v_mul_u32_u24 v2, 4608, v8")
    a("s_lshl_b32 s3, s2, 2"); a("v_add_u32 v8, s3, v8")
    a("v_lshlrev_b32 v9, 11, v8"); a("v_lshlrev_b32 v10, 1, v1"); a("v_add_u32 v9, v9, v10")
    for j in range(8):
        a(f"buffer_load_ushort v{X[j][0]}, v9, s[4:7], 0 offen offset:{128*j}")
        a(f"buffer_load_ushort v{X[j][1]}, v9, s[4:7], 0 offen offset:{1024+128*j}")
    a("s_waitcnt vmcnt(0)")
    for j in range(8):
        a(f"v_lshlrev_b32 v{X[j][0]}, 16, v{X[j][0]}"); a(f"v_lshlrev_b32 v{X[j][1]}, 16, v{X[j][1]}")
    ln2rows(a,[X[j][0] for j in range(8)],[X[j][1] for j in range(8)])
    fft512(a,-1)
    a("v_lshlrev_b32 v6, 3, v7"); a("v_add_u32 v6, v6, v2")
    for k2 in range(8): a(f"ds_write_b64 v6, v[{X[k2][0]}:{X[k2][1]}] offset:{k2*512}")
    a("s_waitcnt lgkmcnt(0)")
    a("v_lshlrev_b32 v11, 4, v8")
    for j in range(5):
        a(f"v_add_u32 v4, {64*j}, v1"); a("v_sub_u32 v5, 512, v4"); a("v_and_b32 v5, 511, v5")
        a("v_lshlrev_b32 v6, 3, v4"); a("v_add_u32 v6, v6, v2"); a("v_lshlrev_b32 v7, 3, v5"); a("v_add_u32 v7, v7, v2")
        a("ds_read_b64 v[16:17], v6"); a("ds_read_b64 v[18:19], v7"); a("s_waitcnt lgkmcnt(0)")
        a("v_add_f32 v20, v16, v18"); a("v_sub_f32 v21, v17, v19"); a("v_add_f32 v22, v17, v19"); a("v_sub_f32 v23, v18, v16")
        for r in range(20,24): a(f"v_mul_f32 v{r}, 0.5, v{r}")
        a("v_lshlrev_b32 v4, 14, v4"); a("v_add_u32 v4, v4, v11")
        if j==4:
            a("v_cmp_eq_u32 vcc, 0, v1"); a("s_and_saveexec_b64 s[12:13], vcc")
        a("buffer_store_dwordx4 v[20:23], v4, s[8:11], 0 offen")
        if j==4: a("s_mov_b64 exec, s[12:13]")
    a("s_endpgm")
    a.lab("K1_TR")
    a("s_sub_u32 s3, s2, 256"); a("s_cmp_ge_u32 s3, 132"); a("s_cbranch_scc1 K1_END")
    a("v_and_b32 v1, 63, v0"); a("v_lshrrev_b32 v8, 6, v0"); a("s_lshl_b32 s3, s3, 2"); a("v_add_u32 v8, s3, v8")
    a.nop(0); a("v_readfirstlane_b32 s3, v8")
    a("s_cmp_ge_u32 s3, 352"); a("s_cbranch_scc1 K1_TD")
    a("s_cmp_ge_u32 s3, 176"); a("s_cbranch_scc1 K1_TU")
    srd(a,4,24,0,512*1376*2); srd(a,8,34,OFF_WG,1376*512*2); a("s_branch K1_TGU")
    a.lab("K1_TU"); a("s_sub_u32 s3, s3, 176"); srd(a,4,26,0,512*1376*2); srd(a,8,34,OFF_WU,1376*512*2)
    a.lab("K1_TGU")
    a("s_lshr_b32 s14, s3, 3"); a("s_and_b32 s15, s3, 7"); a("s_lshl_b32 s14, s14, 6"); a("s_lshl_b32 s15, s15, 6")
    a("s_mov_b32 s36, 2752"); a("s_mov_b32 s37, 1024"); a("s_mov_b32 s38, 1376"); a("s_branch K1_TC")
    a.lab("K1_TD"); a("s_sub_u32 s3, s3, 352"); srd(a,4,28,0,512*1376*2); srd(a,8,34,OFF_WD,1376*512*2)
    a("s_and_b32 s14, s3, 7"); a("s_lshr_b32 s15, s3, 3"); a("s_lshl_b32 s14, s14, 6"); a("s_lshl_b32 s15, s15, 6")
    a("s_mov_b32 s36, 1024"); a("s_mov_b32 s37, 2752"); a("s_mov_b32 s38, 512")
    a.lab("K1_TC")
    a("v_add_u32 v2, s14, v1"); a("v_cmp_gt_u32 vcc, s38, v2"); a("s_and_saveexec_b64 s[12:13], vcc")
    a("s_cbranch_execz K1_END")
    for kb in range(8):
        a(f"s_add_u32 s39, s15, {kb*8}"); a("s_cmp_ge_u32 s39, 1376"); a("s_cbranch_scc1 K1_END"); a("s_mul_i32 s40, s39, s36"); a("v_lshlrev_b32 v3, 1, v2"); a("v_add_u32 v3, s40, v3")
        for i in range(8):
            a(f"buffer_load_ushort v{16+i}, v3, s[4:7], 0 offen"); a("v_add_u32 v3, s36, v3")
        a("s_waitcnt vmcnt(0)")
        for i in range(4): a(f"v_lshl_or_b32 v{24+i}, v{17+2*i}, 16, v{16+2*i}")
        a("v_mul_lo_u32 v3, v2, s37"); a("s_lshl_b32 s40, s39, 1"); a("v_add_u32 v3, s40, v3")
        a("buffer_store_dwordx4 v[24:27], v3, s[8:11], 0 offen")
    a.lab("K1_END"); a("s_endpgm")
    return a

def K2():
    a=A(); load_ptrs(a)
    a("s_cmp_ge_u32 s2, 257"); a("s_cbranch_scc1 K2_END")
    srd(a,4,34,OFF_XT,257*2048*8); srd(a,8,18,0,2048*257*2); srd(a,12,20,0,2048*257*2)
    a("s_lshl_b32 s3, s2, 14"); a("v_lshlrev_b32 v9, 3, v0"); a("v_add_u32 v9, s3, v9")
    for r in range(8): a(f"buffer_load_dwordx2 v[{X[r][0]}:{X[r][1]}], v9, s[4:7], 0 offen offset:{0}"); a("v_add_u32 v9, 2048, v9")
    a("s_waitcnt vmcnt(0)")
    def stages(s,first):
        buf=0; Ns=1
        for R in (8,8,8):
            if Ns>1:
                a("s_barrier")
                a(f"v_lshlrev_b32 v3, 3, v0");
                for r in range(8): a(f"ds_read_b64 v[{X[r][0]}:{X[r][1]}], v3 offset:{(1-buf)*16384+r*2048}")
                a(f"v_and_b32 v4, {Ns-1}, v0"); a("s_waitcnt lgkmcnt(0)")
                twiddle(a,X,8,4,Ns*8,s,TV)
            dft8(a,X,T,s)
            lg=Ns.bit_length()-1
            a(f"v_lshrrev_b32 v3, {lg}, v0"); a(f"v_lshlrev_b32 v3, {lg+3}, v3"); a(f"v_and_b32 v4, {Ns-1}, v0"); a("v_add_u32 v3, v3, v4"); a("v_lshlrev_b32 v3, 3, v3")
            for r in range(8): a(f"ds_write_b64 v3, v[{X[r][0]}:{X[r][1]}] offset:{buf*16384+r*Ns*8}")
            a("s_waitcnt lgkmcnt(0)")
            buf^=1; Ns*=8
        a("s_barrier")
        a("v_lshlrev_b32 v3, 3, v0")
        for q in range(8): a(f"ds_read_b64 v[{X[q][0]}:{X[q][1]}], v3 offset:{(1-buf)*16384+q*2048}")
        a("s_waitcnt lgkmcnt(0)")
        for h in range(2):
            Y=[X[h+2*r] for r in range(4)]
            a(f"v_add_u32 v4, {256*h}, v0"); twiddle(a,Y,4,4,2048,s,TV); dft4(a,Y,T,s)
    stages(-1,True)
    a("v_mul_u32_u24 v5, 514, v0"); a("s_lshl_b32 s3, s2, 1"); a("v_add_u32 v5, s3, v5")
    for q in range(8):
        a(f"buffer_load_ushort v{72+2*q}, v5, s[8:11], 0 offen"); a(f"buffer_load_ushort v{73+2*q}, v5, s[12:15], 0 offen"); a(f"v_add_u32 v5, {256*514}, v5")
    a("s_waitcnt vmcnt(0)")
    for q in range(8):
        c,sn=72+2*q,73+2*q; xr,xi=X[q]
        a(f"v_lshlrev_b32 v{c}, 16, v{c}"); a(f"v_lshlrev_b32 v{sn}, 16, v{sn}")
        a(f"v_mul_f32 v67, v{xi}, v{sn}"); a(f"v_mul_f32 v68, v{xi}, v{c}")
        a(f"v_fma_f32 v{xi}, v{xr}, v{sn}, v68"); a(f"v_fma_f32 v{xr}, v{xr}, v{c}, -v67")
    a("s_barrier")
    stages(1,False)
    a("s_lshl_b32 s3, s2, 14"); a("v_lshlrev_b32 v9, 3, v0"); a("v_add_u32 v9, s3, v9")
    for q in range(8):
        a(f"v_mul_f32 v{X[q][0]}, 0x35800000, v{X[q][0]}"); a(f"v_mul_f32 v{X[q][1]}, 0x35800000, v{X[q][1]}")
        a(f"buffer_store_dwordx2 v[{X[q][0]}:{X[q][1]}], v9, s[4:7], 0 offen"); a("v_add_u32 v9, 2048, v9")
    a.lab("K2_END"); a("s_endpgm")
    return a

def K3():
    a=A(); load_ptrs(a)
    a("s_cmp_ge_u32 s2, 256"); a("s_cbranch_scc1 K3_END")
    srd(a,4,16,0,2048*1024); srd(a,8,34,OFF_XT,257*2048*8); srd(a,12,34,OFF_H,2048*1024); srd(a,40,34,OFF_LN,2048*1024)
    a("v_and_b32 v1, 63, v0"); a("v_lshrrev_b32 v8, 6, v0"); a("v_mul_u32_u24 v2, 4608, v8")
    a("s_lshl_b32 s3, s2, 2"); a("v_add_u32 v8, s3, v8"); a("v_lshlrev_b32 v11, 4, v8")
    for j in range(5):
        a(f"v_add_u32 v4, {64*j}, v1"); a("v_lshlrev_b32 v5, 14, v4"); a("v_add_u32 v5, v5, v11")
        a("buffer_load_dwordx4 v[16:19], v5, s[8:11], 0 offen"); a("s_waitcnt vmcnt(0)")
        a("v_sub_f32 v20, v16, v19"); a("v_add_f32 v21, v17, v18"); a("v_add_f32 v22, v16, v19"); a("v_sub_f32 v23, v18, v17")
        a("v_lshlrev_b32 v6, 3, v4"); a("v_add_u32 v6, v6, v2"); a("v_sub_u32 v7, 512, v4"); a("v_lshlrev_b32 v7, 3, v7"); a("v_add_u32 v7, v7, v2")
        if j==0 or j==4:
            a("v_and_b32 v5, 255, v4"); a("v_cmp_eq_u32 vcc, 0, v5"); a.nop(1)
            a("v_cndmask_b32 v20, v20, v16, vcc"); a("v_cndmask_b32 v21, v21, v18, vcc")
            if j==4: a("s_and_saveexec_b64 s[36:37], vcc")
            else: a("s_mov_b64 s[38:39], vcc")
        a("ds_write_b64 v6, v[20:21]")
        if j==4: a("s_mov_b64 exec, s[36:37]")
        else:
            if j==0: a("s_mov_b64 s[36:37], exec"); a("s_andn2_b64 exec, exec, s[38:39]")
            a("ds_write_b64 v7, v[22:23]")
            if j==0: a("s_mov_b64 exec, s[36:37]")
    a("s_waitcnt lgkmcnt(0)")
    a("v_lshlrev_b32 v3, 3, v1"); a("v_add_u32 v3, v3, v2")
    for j in range(8): a(f"ds_read_b64 v[{X[j][0]}:{X[j][1]}], v3 offset:{512*j}")
    a("s_waitcnt lgkmcnt(0)")
    fft512(a,1)
    a("v_lshlrev_b32 v9, 11, v8"); a("v_lshlrev_b32 v10, 1, v7"); a("v_add_u32 v9, v9, v10")
    for j in range(8):
        a(f"buffer_load_ushort v{T[j][0]}, v9, s[4:7], 0 offen offset:{128*j}"); a(f"buffer_load_ushort v{T[j][1]}, v9, s[4:7], 0 offen offset:{1024+128*j}")
    a("s_waitcnt vmcnt(0)")
    for j in range(8):
        for c in range(2):
            x=X[j][c]; t=T[j][c]
            bfr(a,x,x); a(f"v_lshlrev_b32 v{t}, 16, v{t}"); a(f"v_add_f32 v{x}, v{x}, v{t}"); a(f"v_cvt_pk_bf16_f32 v{x}, v{x}, v{x}")
            a(f"buffer_store_short v{x}, v9, s[12:15], 0 offen offset:{1024*c+128*j}"); a(f"v_lshlrev_b32 v{T[j][c]}, 16, v{x}")
    ln2rows(a,[T[j][0] for j in range(8)],[T[j][1] for j in range(8)])
    for j in range(8):
        for c in range(2):
            t=T[j][c]; a(f"v_lshrrev_b32 v{t}, 16, v{t}"); a(f"buffer_store_short v{t}, v9, s[40:43], 0 offen offset:{1024*c+128*j}")
    a.lab("K3_END"); a("s_endpgm")
    return a

def gemm(lab,which):
    a=A(); load_ptrs(a)
    if which==4:
        a("s_and_b32 s3, s2, 15"); a("s_lshr_b32 s36, s2, 4"); a("s_cmp_ge_u32 s36, 22"); a(f"s_cbranch_scc1 {lab}_END")
        srd(a,4,34,OFF_LN,2048*1024); srd(a,8,34,OFF_WG,1376*1024); srd(a,12,34,OFF_WU,1376*1024); srd(a,40,34,OFF_ACT,2048*2752)
        KS,ldA,ldB=512,1024,1024
        a("s_lshl_b32 s3, s3, 7"); a("s_lshl_b32 s36, s36, 6")
    else:
        a("s_and_b32 s3, s2, 15"); a("s_lshr_b32 s36, s2, 4"); a("s_cmp_ge_u32 s36, 8"); a(f"s_cbranch_scc1 {lab}_END")
        srd(a,4,34,OFF_ACT,2048*2752); srd(a,8,34,OFF_WD,512*2752); srd(a,12,34,OFF_H,2048*1024); srd(a,40,30,0,2048*1024)
        KS,ldA,ldB=1376,2752,2752
        a("s_lshl_b32 s3, s3, 7"); a("s_lshl_b32 s36, s36, 6")
    a("v_and_b32 v1, 63, v0"); a("v_lshrrev_b32 v2, 6, v0"); a("v_and_b32 v3, 1, v2"); a("v_lshrrev_b32 v4, 1, v2")
    a("v_lshlrev_b32 v3, 6, v3"); a("v_add_u32 v3, s3, v3")
    a("v_lshlrev_b32 v4, 5, v4"); a("v_add_u32 v4, s36, v4")
    a("v_and_b32 v5, 31, v1"); a("v_lshrrev_b32 v6, 5, v1"); a("v_lshlrev_b32 v6, 4, v6")
    a("v_add_u32 v7, v3, v5"); a(f"v_mul_u32_u24 v7, {ldA}, v7"); a("v_add_u32 v7, v7, v6"); a(f"v_add_u32 v8, {32*ldA}, v7")
    a("v_add_u32 v9, v4, v5"); a(f"v_mul_u32_u24 v9, {ldB}, v9"); a("v_add_u32 v9, v9, v6")
    for r in range(64,128): a(f"v_mov_b32 v{r}, 0")
    def ld(b,off):
        a(f"buffer_load_dwordx4 v[{b}:{b+3}], v7, s[4:7], s37 offen offset:{off}"); a(f"buffer_load_dwordx4 v[{b+4}:{b+7}], v8, s[4:7], s37 offen offset:{off}")
        a(f"buffer_load_dwordx4 v[{b+8}:{b+11}], v9, s[8:11], s37 offen offset:{off}")
        if which==4: a(f"buffer_load_dwordx4 v[{b+12}:{b+15}], v9, s[12:15], s37 offen offset:{off}")
    def mm(b):
        a(f"v_mfma_f32_32x32x16_bf16 v[64:79], v[{b}:{b+3}], v[{b+8}:{b+11}], v[64:79]"); a(f"v_mfma_f32_32x32x16_bf16 v[80:95], v[{b+4}:{b+7}], v[{b+8}:{b+11}], v[80:95]")
        if which==4:
            a(f"v_mfma_f32_32x32x16_bf16 v[96:111], v[{b}:{b+3}], v[{b+12}:{b+15}], v[96:111]"); a(f"v_mfma_f32_32x32x16_bf16 v[112:127], v[{b+4}:{b+7}], v[{b+12}:{b+15}], v[112:127]")
    n=4 if which==4 else 3
    a("s_mov_b32 s37, 0"); ld(16,0); ld(32,32); a.lab(f"{lab}_L")
    a(f"s_waitcnt vmcnt({n})"); mm(16); a.nop(3); ld(16,64)
    a(f"s_waitcnt vmcnt({n})"); mm(32); a.nop(3); ld(32,96)
    a("s_add_u32 s37, s37, 64"); a(f"s_cmp_lt_u32 s37, {KS*2}"); a(f"s_cbranch_scc1 {lab}_L")
    a("s_waitcnt vmcnt(0)")
    a.nop(15); a.nop(15)
    a("v_add_u32 v10, v4, v5")
    a("v_lshrrev_b32 v6, 5, v1"); a("v_lshlrev_b32 v6, 2, v6"); a("v_add_u32 v6, v6, v3")
    if which==4: a("v_cmp_gt_u32 vcc, 1376, v10"); a("s_and_saveexec_b64 s[38:39], vcc")
    for i in range(2):
        for r in range(16):
            row=32*i+(r>>2)*8+(r&3); g=64+16*i+r; u=96+16*i+r
            a(f"v_add_u32 v11, {row}, v6")
            if which==4:
                a("v_mul_u32_u24 v11, 2752, v11"); a("v_lshlrev_b32 v12, 1, v10"); a("v_add_u32 v11, v11, v12")
                bfr(a,g,g); bfr(a,u,u)
                a(f"v_mul_f32 v13, v{g}, v{g}"); a("v_mul_f32 v13, 0x3d372713, v13"); a(f"v_fma_f32 v13, v13, v{g}, v{g}")
                a("v_mul_f32 v13, 0x40135761, v13"); a("v_exp_f32 v13, v13"); a.nop(0); a("v_add_f32 v13, 1.0, v13"); a("v_rcp_f32 v13, v13"); a.nop(0)
                a(f"v_fma_f32 v13, -v13, v{g}, v{g}"); bfr(a,13,13); a(f"v_mul_f32 v13, v13, v{u}"); a("v_cvt_pk_bf16_f32 v13, v13, v13")
                a("buffer_store_short v13, v11, s[40:43], 0 offen")
            else:
                a("v_lshlrev_b32 v11, 10, v11"); a("v_lshlrev_b32 v12, 1, v10"); a("v_add_u32 v11, v11, v12")
                a("buffer_load_ushort v13, v11, s[12:15], 0 offen"); bfr(a,g,g); a("s_waitcnt vmcnt(0)"); a("v_lshlrev_b32 v13, 16, v13")
                a(f"v_add_f32 v13, v13, v{g}"); a("v_cvt_pk_bf16_f32 v13, v13, v13"); a("buffer_store_short v13, v11, s[40:43], 0 offen")
    a.lab(f"{lab}_END"); a("s_endpgm")
    return a

ks=[("k1_kernel",K1(),(256+132,1,1),18432,80),("k2_kernel",K2(),(257,1,1),32768,96),("k3_kernel",K3(),(256,1,1),18432,80),
    ("k4_kernel",gemm("K4",4),(352,1,1),0,128),("k5_kernel",gemm("K5",5),(128,1,1),0,128)]
out="; generated\n"
for n,_,g,l,_ in ks: out+=f"; @launch kernel={n} grid=({g[0]},{g[1]},{g[2]}) block=(256,1,1) lds={l}\n"
out+='.amdgcn_target "amdgcn-amd-amdhsa--gfx950"\n.text\n'
for n,k,_,_,_ in ks: out+=f".globl {n}\n.p2align 8\n.type {n},@function\n{n}:\n"+k.txt()
out+='.section .rodata,"a"\n'
for n,_,_,_,nv in ks:
    out+=f".p2align 6\n.amdhsa_kernel {n}\n  .amdhsa_next_free_vgpr {nv}\n  .amdhsa_next_free_sgpr 48\n  .amdhsa_accum_offset {nv}\n  .amdhsa_group_segment_fixed_size 0\n  .amdhsa_kernarg_size 80\n  .amdhsa_user_sgpr_count 2\n  .amdhsa_user_sgpr_kernarg_segment_ptr 1\n  .amdhsa_system_sgpr_workgroup_id_x 1\n.end_amdhsa_kernel\n"
open(f"cdna_kernels/{NAME}.s","w").write(out)
```

```python
import sys; sys.path.insert(0,'gen')
from lib import *
NAME="sequential_preLN__spectral_gfnet__geglu_ffn__prompt"
OFF_XT=0; OFF_H=0x500000; OFF_LN=0x700000; OFF_ACT=0x900000; OFF_WG=0x1000000; OFF_WU=0x1200000; OFF_WD=0x1400000
X=[(16+2*i,17+2*i) for i in range(8)]
T=[(32+2*i,33+2*i) for i in range(16)]
TV=[64,65,66,67,68]

def reduce_sum(a,regs):
    for m in (32,16,8,4,2,1):
        a(f"v_xor_b32 v70, {m}, v1"); a("v_lshlrev_b32 v70, 2, v70")
        for i,r in enumerate(regs): a(f"ds_bpermute_b32 v{71+i}, v70, v{r}")
        a("s_waitcnt lgkmcnt(0)")
        for i,r in enumerate(regs): a(f"v_add_f32 v{r}, v{r}, v{71+i}")

def ln2rows(a,RA,RB):
    for R,acc in ((RA,76),(RB,77)):
        a(f"v_add_f32 v{acc}, v{R[0]}, v{R[1]}")
        for r in R[2:]: a(f"v_add_f32 v{acc}, v{acc}, v{r}")
    reduce_sum(a,[76,77])
    a("v_mul_f32 v76, 0x3b000000, v76"); a("v_mul_f32 v77, 0x3b000000, v77")
    for R,mean,acc in ((RA,76,78),(RB,77,79)):
        a(f"v_mov_b32 v{acc}, 0")
        for r in R:
            a(f"v_sub_f32 v70, v{r}, v{mean}"); a(f"v_fmac_f32 v{acc}, v70, v70")
    reduce_sum(a,[78,79])
    for R,mean,acc in ((RA,76,78),(RB,77,79)):
        a(f"v_mul_f32 v{acc}, 0x3b000000, v{acc}"); bfr(a,acc,acc)
        a(f"v_add_f32 v{acc}, 0x3727c5ac, v{acc}"); bfr(a,acc,acc)
        a(f"v_sqrt_f32 v{acc}, v{acc}"); a.nop(0); bfr(a,acc,acc)
        a(f"v_rcp_f32 v{acc}, v{acc}"); bfr(a,mean,mean)
        for r in R:
            a(f"v_sub_f32 v{r}, v{r}, v{mean}"); bfr(a,r,r); a(f"v_mul_f32 v{r}, v{r}, v{acc}"); bfr(a,r,r)

def fft512(a,s):
    dft8(a,X,T,s)
    a("v_lshlrev_b32 v3, 3, v1"); a("v_add_u32 v3, v3, v2")
    for k0 in range(8): a(f"ds_write_b64 v3, v[{X[k0][0]}:{X[k0][1]}] offset:{k0*512}")
    a("v_lshrrev_b32 v4, 3, v1"); a("v_and_b32 v5, 7, v1")
    a("v_lshlrev_b32 v6, 9, v4"); a("v_lshlrev_b32 v7, 3, v5"); a("v_add_u32 v6, v6, v7"); a("v_add_u32 v6, v6, v2")
    a("s_waitcnt lgkmcnt(0)")
    for n1 in range(8): a(f"ds_read_b64 v[{X[n1][0]}:{X[n1][1]}], v6 offset:{n1*64}")
    a("s_waitcnt lgkmcnt(0)")
    twiddle(a,X,8,4,64,s,TV); dft8(a,X,T,s)
    for k1 in range(8): a(f"ds_write_b64 v6, v[{X[k1][0]}:{X[k1][1]}] offset:{k1*64}")
    a("v_lshlrev_b32 v6, 6, v1"); a("v_add_u32 v6, v6, v2")
    a("s_waitcnt lgkmcnt(0)")
    for n0 in range(8): a(f"ds_read_b64 v[{X[n0][0]}:{X[n0][1]}], v6 offset:{n0*8}")
    a("v_lshlrev_b32 v7, 3, v5"); a("v_add_u32 v7, v7, v4")
    a("s_waitcnt lgkmcnt(0)")
    twiddle(a,X,8,7,512,s,TV); dft8(a,X,T,s)

def K1():
    a=A(); load_ptrs(a)
    a("s_cmp_ge_u32 s2, 256"); a("s_cbranch_scc1 K1_TR")
    srd(a,4,16,0,2048*1024); srd(a,8,34,OFF_XT,257*2048*8)
    a("v_and_b32 v1, 63, v0"); a("v_lshrrev_b32 v8, 6, v0")
    a("v_mul_u32_u24 v2, 4608, v8")
    a("s_lshl_b32 s3, s2, 2"); a("v_add_u32 v8, s3, v8")
    a("v_lshlrev_b32 v9, 11, v8"); a("v_lshlrev_b32 v10, 1, v1"); a("v_add_u32 v9, v9, v10")
    for j in range(8):
        a(f"buffer_load_ushort v{X[j][0]}, v9, s[4:7], 0 offen offset:{128*j}")
        a(f"buffer_load_ushort v{X[j][1]}, v9, s[4:7], 0 offen offset:{1024+128*j}")
    a("s_waitcnt vmcnt(0)")
    for j in range(8):
        a(f"v_lshlrev_b32 v{X[j][0]}, 16, v{X[j][0]}"); a(f"v_lshlrev_b32 v{X[j][1]}, 16, v{X[j][1]}")
    ln2rows(a,[X[j][0] for j in range(8)],[X[j][1] for j in range(8)])
    fft512(a,-1)
    a("v_lshlrev_b32 v6, 3, v7"); a("v_add_u32 v6, v6, v2")
    for k2 in range(8): a(f"ds_write_b64 v6, v[{X[k2][0]}:{X[k2][1]}] offset:{k2*512}")
    a("s_waitcnt lgkmcnt(0)")
    a("v_lshlrev_b32 v11, 4, v8")
    for j in range(5):
        a(f"v_add_u32 v4, {64*j}, v1"); a("v_sub_u32 v5, 512, v4"); a("v_and_b32 v5, 511, v5")
        a("v_lshlrev_b32 v6, 3, v4"); a("v_add_u32 v6, v6, v2"); a("v_lshlrev_b32 v7, 3, v5"); a("v_add_u32 v7, v7, v2")
        a("ds_read_b64 v[16:17], v6"); a("ds_read_b64 v[18:19], v7"); a("s_waitcnt lgkmcnt(0)")
        a("v_add_f32 v20, v16, v18"); a("v_sub_f32 v21, v17, v19"); a("v_add_f32 v22, v17, v19"); a("v_sub_f32 v23, v18, v16")
        for r in range(20,24): a(f"v_mul_f32 v{r}, 0.5, v{r}")
        a("v_lshlrev_b32 v4, 14, v4"); a("v_add_u32 v4, v4, v11")
        if j==4:
            a("v_cmp_eq_u32 vcc, 0, v1"); a("s_and_saveexec_b64 s[12:13], vcc")
        a("buffer_store_dwordx4 v[20:23], v4, s[8:11], 0 offen")
        if j==4: a("s_mov_b64 exec, s[12:13]")
    a("s_endpgm")
    a.lab("K1_TR")
    a("s_sub_u32 s3, s2, 256"); a("s_cmp_ge_u32 s3, 132"); a("s_cbranch_scc1 K1_END")
    a("v_and_b32 v1, 63, v0"); a("v_lshrrev_b32 v8, 6, v0"); a("s_lshl_b32 s3, s3, 2"); a("v_add_u32 v8, s3, v8")
    a.nop(0); a("v_readfirstlane_b32 s3, v8")
    a("s_cmp_ge_u32 s3, 352"); a("s_cbranch_scc1 K1_TD")
    a("s_cmp_ge_u32 s3, 176"); a("s_cbranch_scc1 K1_TU")
    srd(a,4,24,0,512*1376*2); srd(a,8,34,OFF_WG,1376*512*2); a("s_branch K1_TGU")
    a.lab("K1_TU"); a("s_sub_u32 s3, s3, 176"); srd(a,4,26,0,512*1376*2); srd(a,8,34,OFF_WU,1376*512*2)
    a.lab("K1_TGU")
    a("s_lshr_b32 s14, s3, 3"); a("s_and_b32 s15, s3, 7"); a("s_lshl_b32 s14, s14, 6"); a("s_lshl_b32 s15, s15, 6")
    a("s_mov_b32 s36, 2752"); a("s_mov_b32 s37, 1024"); a("s_mov_b32 s38, 1376"); a("s_branch K1_TC")
    a.lab("K1_TD"); a("s_sub_u32 s3, s3, 352"); srd(a,4,28,0,512*1376*2); srd(a,8,34,OFF_WD,1376*512*2)
    a("s_and_b32 s14, s3, 7"); a("s_lshr_b32 s15, s3, 3"); a("s_lshl_b32 s14, s14, 6"); a("s_lshl_b32 s15, s15, 6")
    a("s_mov_b32 s36, 1024"); a("s_mov_b32 s37, 2752"); a("s_mov_b32 s38, 512")
    a.lab("K1_TC")
    a("v_add_u32 v2, s14, v1"); a("v_cmp_gt_u32 vcc, s38, v2"); a("s_and_saveexec_b64 s[12:13], vcc")
    a("s_cbranch_execz K1_END")
    for kb in range(8):
        a(f"s_add_u32 s39, s15, {kb*8}"); a("s_cmp_ge_u32 s39, 1376"); a("s_cbranch_scc1 K1_END"); a("s_mul_i32 s40, s39, s36"); a("v_lshlrev_b32 v3, 1, v2"); a("v_add_u32 v3, s40, v3")
        for i in range(8):
            a(f"buffer_load_ushort v{16+i}, v3, s[4:7], 0 offen"); a("v_add_u32 v3, s36, v3")
        a("s_waitcnt vmcnt(0)")
        for i in range(4): a(f"v_lshl_or_b32 v{24+i}, v{17+2*i}, 16, v{16+2*i}")
        a("v_mul_lo_u32 v3, v2, s37"); a("s_lshl_b32 s40, s39, 1"); a("v_add_u32 v3, s40, v3")
        a("buffer_store_dwordx4 v[24:27], v3, s[8:11], 0 offen")
    a.lab("K1_END"); a("s_endpgm")
    return a

def K2():
    a=A(); load_ptrs(a)
    a("s_cmp_ge_u32 s2, 257"); a("s_cbranch_scc1 K2_END")
    srd(a,4,34,OFF_XT,257*2048*8); srd(a,8,18,0,2048*257*2); srd(a,12,20,0,2048*257*2)
    a("s_lshl_b32 s3, s2, 14"); a("v_lshlrev_b32 v9, 3, v0"); a("v_add_u32 v9, s3, v9")
    for r in range(8): a(f"buffer_load_dwordx2 v[{X[r][0]}:{X[r][1]}], v9, s[4:7], 0 offen offset:{0}"); a("v_add_u32 v9, 2048, v9")
    a("s_waitcnt vmcnt(0)")
    def stages(s,first):
        buf=0; Ns=1
        for R in (8,8,8):
            if Ns>1:
                a("s_barrier")
                a(f"v_lshlrev_b32 v3, 3, v0");
                for r in range(8): a(f"ds_read_b64 v[{X[r][0]}:{X[r][1]}], v3 offset:{(1-buf)*16384+r*2048}")
                a(f"v_and_b32 v4, {Ns-1}, v0"); a("s_waitcnt lgkmcnt(0)")
                twiddle(a,X,8,4,Ns*8,s,TV)
            dft8(a,X,T,s)
            lg=Ns.bit_length()-1
            a(f"v_lshrrev_b32 v3, {lg}, v0"); a(f"v_lshlrev_b32 v3, {lg+3}, v3"); a(f"v_and_b32 v4, {Ns-1}, v0"); a("v_add_u32 v3, v3, v4"); a("v_lshlrev_b32 v3, 3, v3")
            for r in range(8): a(f"ds_write_b64 v3, v[{X[r][0]}:{X[r][1]}] offset:{buf*16384+r*Ns*8}")
            a("s_waitcnt lgkmcnt(0)")
            buf^=1; Ns*=8
        a("s_barrier")
        a("v_lshlrev_b32 v3, 3, v0")
        for q in range(8): a(f"ds_read_b64 v[{X[q][0]}:{X[q][1]}], v3 offset:{(1-buf)*16384+q*2048}")
        a("s_waitcnt lgkmcnt(0)")
        for h in range(2):
            Y=[X[h+2*r] for r in range(4)]
            a(f"v_add_u32 v4, {256*h}, v0"); twiddle(a,Y,4,4,2048,s,TV); dft4(a,Y,T,s)
    stages(-1,True)
    a("v_mul_u32_u24 v5, 514, v0"); a("s_lshl_b32 s3, s2, 1"); a("v_add_u32 v5, s3, v5")
    for q in range(8):
        a(f"buffer_load_ushort v{72+2*q}, v5, s[8:11], 0 offen"); a(f"buffer_load_ushort v{73+2*q}, v5, s[12:15], 0 offen"); a(f"v_add_u32 v5, {256*514}, v5")
    a("s_waitcnt vmcnt(0)")
    for q in range(8):
        c,sn=72+2*q,73+2*q; xr,xi=X[q]
        a(f"v_lshlrev_b32 v{c}, 16, v{c}"); a(f"v_lshlrev_b32 v{sn}, 16, v{sn}")
        a(f"v_mul_f32 v67, v{xi}, v{sn}"); a(f"v_mul_f32 v68, v{xi}, v{c}")
        a(f"v_fma_f32 v{xi}, v{xr}, v{sn}, v68"); a(f"v_fma_f32 v{xr}, v{xr}, v{c}, -v67")
    a("s_barrier")
    stages(1,False)
    a("s_lshl_b32 s3, s2, 14"); a("v_lshlrev_b32 v9, 3, v0"); a("v_add_u32 v9, s3, v9")
    for q in range(8):
        a(f"v_mul_f32 v{X[q][0]}, 0x35800000, v{X[q][0]}"); a(f"v_mul_f32 v{X[q][1]}, 0x35800000, v{X[q][1]}")
        a(f"buffer_store_dwordx2 v[{X[q][0]}:{X[q][1]}], v9, s[4:7], 0 offen"); a("v_add_u32 v9, 2048, v9")
    a.lab("K2_END"); a("s_endpgm")
    return a

def K3():
    a=A(); load_ptrs(a)
    a("s_cmp_ge_u32 s2, 256"); a("s_cbranch_scc1 K3_END")
    srd(a,4,16,0,2048*1024); srd(a,8,34,OFF_XT,257*2048*8); srd(a,12,34,OFF_H,2048*1024); srd(a,40,34,OFF_LN,2048*1024)
    a("v_and_b32 v1, 63, v0"); a("v_lshrrev_b32 v8, 6, v0"); a("v_mul_u32_u24 v2, 4608, v8")
    a("s_lshl_b32 s3, s2, 2"); a("v_add_u32 v8, s3, v8"); a("v_lshlrev_b32 v11, 4, v8")
    for j in range(5):
        a(f"v_add_u32 v4, {64*j}, v1"); a("v_lshlrev_b32 v5, 14, v4"); a("v_add_u32 v5, v5, v11")
        a("buffer_load_dwordx4 v[16:19], v5, s[8:11], 0 offen"); a("s_waitcnt vmcnt(0)")
        a("v_sub_f32 v20, v16, v19"); a("v_add_f32 v21, v17, v18"); a("v_add_f32 v22, v16, v19"); a("v_sub_f32 v23, v18, v17")
        a("v_lshlrev_b32 v6, 3, v4"); a("v_add_u32 v6, v6, v2"); a("v_sub_u32 v7, 512, v4"); a("v_lshlrev_b32 v7, 3, v7"); a("v_add_u32 v7, v7, v2")
        if j==0 or j==4:
            a("v_and_b32 v5, 255, v4"); a("v_cmp_eq_u32 vcc, 0, v5"); a.nop(1)
            a("v_cndmask_b32 v20, v20, v16, vcc"); a("v_cndmask_b32 v21, v21, v18, vcc")
            if j==4: a("s_and_saveexec_b64 s[36:37], vcc")
            else: a("s_mov_b64 s[38:39], vcc")
        a("ds_write_b64 v6, v[20:21]")
        if j==4: a("s_mov_b64 exec, s[36:37]")
        else:
            if j==0: a("s_mov_b64 s[36:37], exec"); a("s_andn2_b64 exec, exec, s[38:39]")
            a("ds_write_b64 v7, v[22:23]")
            if j==0: a("s_mov_b64 exec, s[36:37]")
    a("s_waitcnt lgkmcnt(0)")
    a("v_lshlrev_b32 v3, 3, v1"); a("v_add_u32 v3, v3, v2")
    for j in range(8): a(f"ds_read_b64 v[{X[j][0]}:{X[j][1]}], v3 offset:{512*j}")
    a("s_waitcnt lgkmcnt(0)")
    fft512(a,1)
    a("v_lshlrev_b32 v9, 11, v8"); a("v_lshlrev_b32 v10, 1, v7"); a("v_add_u32 v9, v9, v10")
    for j in range(8):
        a(f"buffer_load_ushort v{T[j][0]}, v9, s[4:7], 0 offen offset:{128*j}"); a(f"buffer_load_ushort v{T[j][1]}, v9, s[4:7], 0 offen offset:{1024+128*j}")
    a("s_waitcnt vmcnt(0)")
    for j in range(8):
        for c in range(2):
            x=X[j][c]; t=T[j][c]
            bfr(a,x,x); a(f"v_lshlrev_b32 v{t}, 16, v{t}"); a(f"v_add_f32 v{x}, v{x}, v{t}"); a(f"v_cvt_pk_bf16_f32 v{x}, v{x}, v{x}")
            a(f"buffer_store_short v{x}, v9, s[12:15], 0 offen offset:{1024*c+128*j}"); a(f"v_lshlrev_b32 v{T[j][c]}, 16, v{x}")
    ln2rows(a,[T[j][0] for j in range(8)],[T[j][1] for j in range(8)])
    for j in range(8):
        for c in range(2):
            t=T[j][c]; a(f"v_lshrrev_b32 v{t}, 16, v{t}"); a(f"buffer_store_short v{t}, v9, s[40:43], 0 offen offset:{1024*c+128*j}")
    a.lab("K3_END"); a("s_endpgm")
    return a

def gemm(lab,which):
    a=A(); load_ptrs(a)
    if which==4:
        a("s_and_b32 s3, s2, 15"); a("s_lshr_b32 s36, s2, 4"); a("s_cmp_ge_u32 s36, 22"); a(f"s_cbranch_scc1 {lab}_END")
        srd(a,4,34,OFF_LN,2048*1024); srd(a,8,34,OFF_WG,1376*1024); srd(a,12,34,OFF_WU,1376*1024); srd(a,40,34,OFF_ACT,2048*2752)
        KS,ldA,ldB=512,1024,1024
        a("s_lshl_b32 s3, s3, 7"); a("s_lshl_b32 s36, s36, 6")
    else:
        a("s_and_b32 s3, s2, 15"); a("s_lshr_b32 s36, s2, 4"); a("s_cmp_ge_u32 s36, 8"); a(f"s_cbranch_scc1 {lab}_END")
        srd(a,4,34,OFF_ACT,2048*2752); srd(a,8,34,OFF_WD,512*2752); srd(a,12,34,OFF_H,2048*1024); srd(a,40,30,0,2048*1024)
        KS,ldA,ldB=1376,2752,2752
        a("s_lshl_b32 s3, s3, 7"); a("s_lshl_b32 s36, s36, 6")
    a("v_and_b32 v1, 63, v0"); a("v_lshrrev_b32 v2, 6, v0"); a("v_and_b32 v3, 1, v2"); a("v_lshrrev_b32 v4, 1, v2")
    a("v_lshlrev_b32 v3, 6, v3"); a("v_add_u32 v3, s3, v3")
    a("v_lshlrev_b32 v4, 5, v4"); a("v_add_u32 v4, s36, v4")
    a("v_and_b32 v5, 31, v1"); a("v_lshrrev_b32 v6, 5, v1"); a("v_lshlrev_b32 v6, 4, v6")
    a("v_add_u32 v7, v3, v5"); a(f"v_mul_u32_u24 v7, {ldA}, v7"); a("v_add_u32 v7, v7, v6"); a(f"v_add_u32 v8, {32*ldA}, v7")
    a("v_add_u32 v9, v4, v5"); a(f"v_mul_u32_u24 v9, {ldB}, v9"); a("v_add_u32 v9, v9, v6")
    KB=64 if which==4 else 32; RB=KB*2; ST=RB+16; CPR=RB//16; RPL=256//CPR; NA=128//RPL
    nB=(128 if which==4 else 64)//RPL; BUF=256*ST
    for r in range(64,128): a(f"v_mov_b32 v{r}, 0")
    lg=CPR.bit_length()-1
    a(f"v_lshrrev_b32 v10, {lg}, v0"); a(f"v_and_b32 v11, {CPR-1}, v0"); a("v_lshlrev_b32 v11, 4, v11")
    a(f"v_mul_u32_u24 v12, {ST}, v10"); a("v_add_u32 v12, v12, v11")
    a("v_add_u32 v13, s3, v10"); a(f"v_mul_u32_u24 v13, {ldA}, v13"); a("v_add_u32 v13, v13, v11")
    a("v_add_u32 v14, s36, v10"); a(f"v_mul_u32_u24 v14, {ldB}, v14"); a("v_add_u32 v14, v14, v11")
    a("v_sub_u32 v7, v3, s3"); a("v_add_u32 v7, v7, v5"); a(f"v_mul_u32_u24 v7, {ST}, v7"); a("v_add_u32 v7, v7, v6")
    a("v_sub_u32 v9, v4, s36"); a("v_add_u32 v9, v9, v5"); a(f"v_mul_u32_u24 v9, {ST}, v9"); a("v_add_u32 v9, v9, v6"); a(f"v_add_u32 v9, {128*ST}, v9")
    a(f"v_add_u32 v15, {BUF}, v12"); a(f"v_add_u32 v8, {BUF}, v7"); a(f"v_add_u32 v10, {BUF}, v9")
    def gl():
        for j in range(NA): a(f"buffer_load_dwordx4 v[{16+4*j}:{19+4*j}], v13, s[4:7], s37 offen offset:{0}") if False else None
        for j in range(NA):
            a(f"s_add_u32 s38, s37, {j*RPL*ldA}"); a(f"buffer_load_dwordx4 v[{16+4*j}:{19+4*j}], v13, s[4:7], s38 offen")
        for j in range(nB):
            h=nB//2; sr="s[8:11]" if (which==5 or j<h) else "s[12:15]"; jj=j if (which==5 or j<h) else j-h
            a(f"s_add_u32 s38, s37, {jj*RPL*ldB}"); a(f"buffer_load_dwordx4 v[{32+4*j}:{35+4*j}], v14, {sr}, s38 offen")
    def sw(b):
        for j in range(NA): a(f"ds_write_b128 v{(12,15)[b]}, v[{16+4*j}:{19+4*j}] offset:{j*RPL*ST}")
        for j in range(nB): a(f"ds_write_b128 v{(12,15)[b]}, v[{32+4*j}:{35+4*j}] offset:{(128+j*RPL)*ST}")
    def comp(b):
        for ks in range(KB//16):
            o=ks*32; pa=(7,8)[b]; pb=(9,10)[b]
            a(f"ds_read_b128 v[48:51], v{pa} offset:{o}"); a(f"ds_read_b128 v[52:55], v{pa} offset:{o+32*ST}"); a(f"ds_read_b128 v[56:59], v{pb} offset:{o}")
            if which==4: a(f"ds_read_b128 v[60:63], v{pb} offset:{o+64*ST}")
            a("s_waitcnt lgkmcnt(0)")
            a("v_mfma_f32_32x32x16_bf16 v[64:79], v[48:51], v[56:59], v[64:79]"); a("v_mfma_f32_32x32x16_bf16 v[80:95], v[52:55], v[56:59], v[80:95]")
            if which==4:
                a("v_mfma_f32_32x32x16_bf16 v[96:111], v[48:51], v[60:63], v[96:111]"); a("v_mfma_f32_32x32x16_bf16 v[112:127], v[52:55], v[60:63], v[112:127]")
            a.nop(1)
    a("s_mov_b32 s37, 0"); gl(); a("s_waitcnt vmcnt(0)"); sw(0); a(f"s_add_u32 s37, s37, {RB}"); gl(); a("s_waitcnt lgkmcnt(0)"); a("s_barrier")
    a.lab(f"{lab}_L")
    for b in range(2):
        comp(b); a("s_waitcnt vmcnt(0)"); sw(1-b); a(f"s_add_u32 s37, s37, {RB}"); gl(); a("s_waitcnt lgkmcnt(0)"); a("s_barrier")
        a(f"s_cmp_gt_u32 s37, {KS*2+RB-1}"); a(f"s_cbranch_scc1 {lab}_D")
    a(f"s_branch {lab}_L"); a.lab(f"{lab}_D"); a("s_waitcnt vmcnt(0)")
    a.nop(15); a.nop(15)
    a("v_add_u32 v10, v4, v5")
    a("v_lshrrev_b32 v6, 5, v1"); a("v_lshlrev_b32 v6, 2, v6"); a("v_add_u32 v6, v6, v3")
    if which==4: a("v_cmp_gt_u32 vcc, 1376, v10"); a("s_and_saveexec_b64 s[38:39], vcc")
    for i in range(2):
        for r in range(16):
            row=32*i+(r>>2)*8+(r&3); g=64+16*i+r; u=96+16*i+r
            a(f"v_add_u32 v11, {row}, v6")
            if which==4:
                a("v_mul_u32_u24 v11, 2752, v11"); a("v_lshlrev_b32 v12, 1, v10"); a("v_add_u32 v11, v11, v12")
                bfr(a,g,g); bfr(a,u,u)
                a(f"v_mul_f32 v13, v{g}, v{g}"); a("v_mul_f32 v13, 0x3d372713, v13"); a(f"v_fma_f32 v13, v13, v{g}, v{g}")
                a("v_mul_f32 v13, 0x40135761, v13"); a("v_exp_f32 v13, v13"); a.nop(0); a("v_add_f32 v13, 1.0, v13"); a("v_rcp_f32 v13, v13"); a.nop(0)
                a(f"v_fma_f32 v13, -v13, v{g}, v{g}"); bfr(a,13,13); a(f"v_mul_f32 v13, v13, v{u}"); a("v_cvt_pk_bf16_f32 v13, v13, v13")
                a("buffer_store_short v13, v11, s[40:43], 0 offen")
            else:
                a("v_lshlrev_b32 v11, 10, v11"); a("v_lshlrev_b32 v12, 1, v10"); a("v_add_u32 v11, v11, v12")
                a("buffer_load_ushort v13, v11, s[12:15], 0 offen"); bfr(a,g,g); a("s_waitcnt vmcnt(0)"); a("v_lshlrev_b32 v13, 16, v13")
                a(f"v_add_f32 v13, v13, v{g}"); a("v_cvt_pk_bf16_f32 v13, v13, v13"); a("buffer_store_short v13, v11, s[40:43], 0 offen")
    a.lab(f"{lab}_END"); a("s_endpgm")
    return a

ks=[("k1_kernel",K1(),(256+132,1,1),18432,80),("k2_kernel",K2(),(257,1,1),32768,96),("k3_kernel",K3(),(256,1,1),18432,80),
    ("k4_kernel",gemm("K4",4),(352,1,1),73728,128),("k5_kernel",gemm("K5",5),(128,1,1),40960,128)]
out="; generated\n"
for n,_,g,l,_ in ks: out+=f"; @launch kernel={n} grid=({g[0]},{g[1]},{g[2]}) block=(256,1,1) lds={l}\n"
out+='.amdgcn_target "amdgcn-amd-amdhsa--gfx950"\n.text\n'
for n,k,_,_,_ in ks: out+=f".globl {n}\n.p2align 8\n.type {n},@function\n{n}:\n"+k.txt()
out+='.section .rodata,"a"\n'
for n,_,_,_,nv in ks:
    out+=f".p2align 6\n.amdhsa_kernel {n}\n  .amdhsa_next_free_vgpr {nv}\n  .amdhsa_next_free_sgpr 48\n  .amdhsa_accum_offset {nv}\n  .amdhsa_group_segment_fixed_size 0\n  .amdhsa_kernarg_size 80\n  .amdhsa_user_sgpr_count 2\n  .amdhsa_user_sgpr_kernarg_segment_ptr 1\n  .amdhsa_system_sgpr_workgroup_id_x 1\n.end_amdhsa_kernel\n"
open(f"cdna_kernels/{NAME}.s","w").write(out)
```

```python
import sys; sys.path.insert(0,'gen')
from lib import *
NAME="sequential_preLN__spectral_gfnet__geglu_ffn__prompt"
OFF_XT=0; OFF_H=0x500000; OFF_LN=0x700000; OFF_ACT=0x900000; OFF_WG=0x1000000; OFF_WU=0x1200000; OFF_WD=0x1400000
X=[(16+2*i,17+2*i) for i in range(8)]
T=[(32+2*i,33+2*i) for i in range(16)]
TV=[64,65,66,67,68]

def reduce_sum(a,regs):
    for m in (32,16,8,4,2,1):
        a(f"v_xor_b32 v70, {m}, v1"); a("v_lshlrev_b32 v70, 2, v70")
        for i,r in enumerate(regs): a(f"ds_bpermute_b32 v{71+i}, v70, v{r}")
        a("s_waitcnt lgkmcnt(0)")
        for i,r in enumerate(regs): a(f"v_add_f32 v{r}, v{r}, v{71+i}")

def ln2rows(a,RA,RB):
    for R,acc in ((RA,76),(RB,77)):
        a(f"v_add_f32 v{acc}, v{R[0]}, v{R[1]}")
        for r in R[2:]: a(f"v_add_f32 v{acc}, v{acc}, v{r}")
    reduce_sum(a,[76,77])
    a("v_mul_f32 v76, 0x3b000000, v76"); a("v_mul_f32 v77, 0x3b000000, v77")
    for R,mean,acc in ((RA,76,78),(RB,77,79)):
        a(f"v_mov_b32 v{acc}, 0")
        for r in R:
            a(f"v_sub_f32 v70, v{r}, v{mean}"); a(f"v_fmac_f32 v{acc}, v70, v70")
    reduce_sum(a,[78,79])
    for R,mean,acc in ((RA,76,78),(RB,77,79)):
        a(f"v_mul_f32 v{acc}, 0x3b000000, v{acc}"); bfr(a,acc,acc)
        a(f"v_add_f32 v{acc}, 0x3727c5ac, v{acc}"); bfr(a,acc,acc)
        a(f"v_sqrt_f32 v{acc}, v{acc}"); a.nop(0); bfr(a,acc,acc)
        a(f"v_rcp_f32 v{acc}, v{acc}"); bfr(a,mean,mean)
        for r in R:
            a(f"v_sub_f32 v{r}, v{r}, v{mean}"); bfr(a,r,r); a(f"v_mul_f32 v{r}, v{r}, v{acc}"); bfr(a,r,r)

def fft512(a,s):
    dft8(a,X,T,s)
    a("v_lshlrev_b32 v3, 3, v1"); a("v_add_u32 v3, v3, v2")
    for k0 in range(8): a(f"ds_write_b64 v3, v[{X[k0][0]}:{X[k0][1]}] offset:{k0*512}")
    a("v_lshrrev_b32 v4, 3, v1"); a("v_and_b32 v5, 7, v1")
    a("v_lshlrev_b32 v6, 9, v4"); a("v_lshlrev_b32 v7, 3, v5"); a("v_add_u32 v6, v6, v7"); a("v_add_u32 v6, v6, v2")
    a("s_waitcnt lgkmcnt(0)")
    for n1 in range(8): a(f"ds_read_b64 v[{X[n1][0]}:{X[n1][1]}], v6 offset:{n1*64}")
    a("s_waitcnt lgkmcnt(0)")
    twiddle(a,X,8,4,64,s,TV); dft8(a,X,T,s)
    for k1 in range(8): a(f"ds_write_b64 v6, v[{X[k1][0]}:{X[k1][1]}] offset:{k1*64}")
    a("v_lshlrev_b32 v6, 6, v1"); a("v_add_u32 v6, v6, v2")
    a("s_waitcnt lgkmcnt(0)")
    for n0 in range(8): a(f"ds_read_b64 v[{X[n0][0]}:{X[n0][1]}], v6 offset:{n0*8}")
    a("v_lshlrev_b32 v7, 3, v5"); a("v_add_u32 v7, v7, v4")
    a("s_waitcnt lgkmcnt(0)")
    twiddle(a,X,8,7,512,s,TV); dft8(a,X,T,s)

def K1():
    a=A(); load_ptrs(a)
    a("s_cmp_ge_u32 s2, 256"); a("s_cbranch_scc1 K1_TR")
    srd(a,4,16,0,2048*1024); srd(a,8,34,OFF_XT,257*2048*8)
    a("v_and_b32 v1, 63, v0"); a("v_lshrrev_b32 v8, 6, v0")
    a("v_mul_u32_u24 v2, 4608, v8")
    a("s_lshl_b32 s3, s2, 2"); a("v_add_u32 v8, s3, v8")
    a("v_lshlrev_b32 v9, 11, v8"); a("v_lshlrev_b32 v10, 1, v1"); a("v_add_u32 v9, v9, v10")
    for j in range(8):
        a(f"buffer_load_ushort v{X[j][0]}, v9, s[4:7], 0 offen offset:{128*j}")
        a(f"buffer_load_ushort v{X[j][1]}, v9, s[4:7], 0 offen offset:{1024+128*j}")
    a("s_waitcnt vmcnt(0)")
    for j in range(8):
        a(f"v_lshlrev_b32 v{X[j][0]}, 16, v{X[j][0]}"); a(f"v_lshlrev_b32 v{X[j][1]}, 16, v{X[j][1]}")
    ln2rows(a,[X[j][0] for j in range(8)],[X[j][1] for j in range(8)])
    fft512(a,-1)
    a("v_lshlrev_b32 v6, 3, v7"); a("v_add_u32 v6, v6, v2")
    for k2 in range(8): a(f"ds_write_b64 v6, v[{X[k2][0]}:{X[k2][1]}] offset:{k2*512}")
    a("s_waitcnt lgkmcnt(0)")
    a("v_lshlrev_b32 v11, 4, v8")
    for j in range(5):
        a(f"v_add_u32 v4, {64*j}, v1"); a("v_sub_u32 v5, 512, v4"); a("v_and_b32 v5, 511, v5")
        a("v_lshlrev_b32 v6, 3, v4"); a("v_add_u32 v6, v6, v2"); a("v_lshlrev_b32 v7, 3, v5"); a("v_add_u32 v7, v7, v2")
        a("ds_read_b64 v[16:17], v6"); a("ds_read_b64 v[18:19], v7"); a("s_waitcnt lgkmcnt(0)")
        a("v_add_f32 v20, v16, v18"); a("v_sub_f32 v21, v17, v19"); a("v_add_f32 v22, v17, v19"); a("v_sub_f32 v23, v18, v16")
        for r in range(20,24): a(f"v_mul_f32 v{r}, 0.5, v{r}")
        a("v_lshlrev_b32 v4, 14, v4"); a("v_add_u32 v4, v4, v11")
        if j==4:
            a("v_cmp_eq_u32 vcc, 0, v1"); a("s_and_saveexec_b64 s[12:13], vcc")
        a("buffer_store_dwordx4 v[20:23], v4, s[8:11], 0 offen")
        if j==4: a("s_mov_b64 exec, s[12:13]")
    a("s_endpgm")
    a.lab("K1_TR")
    a("s_sub_u32 s3, s2, 256"); a("s_cmp_ge_u32 s3, 132"); a("s_cbranch_scc1 K1_END")
    a("v_and_b32 v1, 63, v0"); a("v_lshrrev_b32 v8, 6, v0"); a("s_lshl_b32 s3, s3, 2"); a("v_add_u32 v8, s3, v8")
    a.nop(0); a("v_readfirstlane_b32 s3, v8")
    a("s_cmp_ge_u32 s3, 352"); a("s_cbranch_scc1 K1_TD")
    a("s_cmp_ge_u32 s3, 176"); a("s_cbranch_scc1 K1_TU")
    srd(a,4,24,0,512*1376*2); srd(a,8,34,OFF_WG,1376*512*2); a("s_branch K1_TGU")
    a.lab("K1_TU"); a("s_sub_u32 s3, s3, 176"); srd(a,4,26,0,512*1376*2); srd(a,8,34,OFF_WU,1376*512*2)
    a.lab("K1_TGU")
    a("s_lshr_b32 s14, s3, 3"); a("s_and_b32 s15, s3, 7"); a("s_lshl_b32 s14, s14, 6"); a("s_lshl_b32 s15, s15, 6")
    a("s_mov_b32 s36, 2752"); a("s_mov_b32 s37, 1024"); a("s_mov_b32 s38, 1376"); a("s_branch K1_TC")
    a.lab("K1_TD"); a("s_sub_u32 s3, s3, 352"); srd(a,4,28,0,512*1376*2); srd(a,8,34,OFF_WD,1376*512*2)
    a("s_and_b32 s14, s3, 7"); a("s_lshr_b32 s15, s3, 3"); a("s_lshl_b32 s14, s14, 6"); a("s_lshl_b32 s15, s15, 6")
    a("s_mov_b32 s36, 1024"); a("s_mov_b32 s37, 2752"); a("s_mov_b32 s38, 512")
    a.lab("K1_TC")
    a("v_add_u32 v2, s14, v1"); a("v_cmp_gt_u32 vcc, s38, v2"); a("s_and_saveexec_b64 s[12:13], vcc")
    a("s_cbranch_execz K1_END")
    for kb in range(8):
        a(f"s_add_u32 s39, s15, {kb*8}"); a("s_cmp_ge_u32 s39, 1376"); a("s_cbranch_scc1 K1_END"); a("s_mul_i32 s40, s39, s36"); a("v_lshlrev_b32 v3, 1, v2"); a("v_add_u32 v3, s40, v3")
        for i in range(8):
            a(f"buffer_load_ushort v{16+i}, v3, s[4:7], 0 offen"); a("v_add_u32 v3, s36, v3")
        a("s_waitcnt vmcnt(0)")
        for i in range(4): a(f"v_lshl_or_b32 v{24+i}, v{17+2*i}, 16, v{16+2*i}")
        a("v_mul_lo_u32 v3, v2, s37"); a("s_lshl_b32 s40, s39, 1"); a("v_add_u32 v3, s40, v3")
        a("buffer_store_dwordx4 v[24:27], v3, s[8:11], 0 offen")
    a.lab("K1_END"); a("s_endpgm")
    return a

def K2():
    a=A(); load_ptrs(a)
    a("s_cmp_ge_u32 s2, 257"); a("s_cbranch_scc1 K2_END")
    srd(a,4,34,OFF_XT,257*2048*8); srd(a,8,18,0,2048*257*2); srd(a,12,20,0,2048*257*2)
    a("s_lshl_b32 s3, s2, 14"); a("v_lshlrev_b32 v9, 3, v0"); a("v_add_u32 v9, s3, v9")
    for r in range(8): a(f"buffer_load_dwordx2 v[{X[r][0]}:{X[r][1]}], v9, s[4:7], 0 offen offset:{0}"); a("v_add_u32 v9, 2048, v9")
    a("s_waitcnt vmcnt(0)")
    def stages(s,first):
        buf=0; Ns=1
        for R in (8,8,8):
            if Ns>1:
                a("s_barrier")
                a(f"v_lshlrev_b32 v3, 3, v0");
                for r in range(8): a(f"ds_read_b64 v[{X[r][0]}:{X[r][1]}], v3 offset:{(1-buf)*16384+r*2048}")
                a(f"v_and_b32 v4, {Ns-1}, v0"); a("s_waitcnt lgkmcnt(0)")
                twiddle(a,X,8,4,Ns*8,s,TV)
            dft8(a,X,T,s)
            lg=Ns.bit_length()-1
            a(f"v_lshrrev_b32 v3, {lg}, v0"); a(f"v_lshlrev_b32 v3, {lg+3}, v3"); a(f"v_and_b32 v4, {Ns-1}, v0"); a("v_add_u32 v3, v3, v4"); a("v_lshlrev_b32 v3, 3, v3")
            for r in range(8): a(f"ds_write_b64 v3, v[{X[r][0]}:{X[r][1]}] offset:{buf*16384+r*Ns*8}")
            a("s_waitcnt lgkmcnt(0)")
            buf^=1; Ns*=8
        a("s_barrier")
        a("v_lshlrev_b32 v3, 3, v0")
        for q in range(8): a(f"ds_read_b64 v[{X[q][0]}:{X[q][1]}], v3 offset:{(1-buf)*16384+q*2048}")
        a("s_waitcnt lgkmcnt(0)")
        for h in range(2):
            Y=[X[h+2*r] for r in range(4)]
            a(f"v_add_u32 v4, {256*h}, v0"); twiddle(a,Y,4,4,2048,s,TV); dft4(a,Y,T,s)
    stages(-1,True)
    a("v_mul_u32_u24 v5, 514, v0"); a("s_lshl_b32 s3, s2, 1"); a("v_add_u32 v5, s3, v5")
    for q in range(8):
        a(f"buffer_load_ushort v{72+2*q}, v5, s[8:11], 0 offen"); a(f"buffer_load_ushort v{73+2*q}, v5, s[12:15], 0 offen"); a(f"v_add_u32 v5, {256*514}, v5")
    a("s_waitcnt vmcnt(0)")
    for q in range(8):
        c,sn=72+2*q,73+2*q; xr,xi=X[q]
        a(f"v_lshlrev_b32 v{c}, 16, v{c}"); a(f"v_lshlrev_b32 v{sn}, 16, v{sn}")
        a(f"v_mul_f32 v67, v{xi}, v{sn}"); a(f"v_mul_f32 v68, v{xi}, v{c}")
        a(f"v_fma_f32 v{xi}, v{xr}, v{sn}, v68"); a(f"v_fma_f32 v{xr}, v{xr}, v{c}, -v67")
    a("s_barrier")
    stages(1,False)
    a("s_lshl_b32 s3, s2, 14"); a("v_lshlrev_b32 v9, 3, v0"); a("v_add_u32 v9, s3, v9")
    for q in range(8):
        a(f"v_mul_f32 v{X[q][0]}, 0x35800000, v{X[q][0]}"); a(f"v_mul_f32 v{X[q][1]}, 0x35800000, v{X[q][1]}")
        a(f"buffer_store_dwordx2 v[{X[q][0]}:{X[q][1]}], v9, s[4:7], 0 offen"); a("v_add_u32 v9, 2048, v9")
    a.lab("K2_END"); a("s_endpgm")
    return a

def K3():
    a=A(); load_ptrs(a)
    a("s_cmp_ge_u32 s2, 256"); a("s_cbranch_scc1 K3_END")
    srd(a,4,16,0,2048*1024); srd(a,8,34,OFF_XT,257*2048*8); srd(a,12,34,OFF_H,2048*1024); srd(a,40,34,OFF_LN,2048*1024)
    a("v_and_b32 v1, 63, v0"); a("v_lshrrev_b32 v8, 6, v0"); a("v_mul_u32_u24 v2, 4608, v8")
    a("s_lshl_b32 s3, s2, 2"); a("v_add_u32 v8, s3, v8"); a("v_lshlrev_b32 v11, 4, v8")
    for j in range(5):
        a(f"v_add_u32 v4, {64*j}, v1"); a("v_lshlrev_b32 v5, 14, v4"); a("v_add_u32 v5, v5, v11")
        a("buffer_load_dwordx4 v[16:19], v5, s[8:11], 0 offen"); a("s_waitcnt vmcnt(0)")
        a("v_sub_f32 v20, v16, v19"); a("v_add_f32 v21, v17, v18"); a("v_add_f32 v22, v16, v19"); a("v_sub_f32 v23, v18, v17")
        a("v_lshlrev_b32 v6, 3, v4"); a("v_add_u32 v6, v6, v2"); a("v_sub_u32 v7, 512, v4"); a("v_lshlrev_b32 v7, 3, v7"); a("v_add_u32 v7, v7, v2")
        if j==0 or j==4:
            a("v_and_b32 v5, 255, v4"); a("v_cmp_eq_u32 vcc, 0, v5"); a.nop(1)
            a("v_cndmask_b32 v20, v20, v16, vcc"); a("v_cndmask_b32 v21, v21, v18, vcc")
            if j==4: a("s_and_saveexec_b64 s[36:37], vcc")
            else: a("s_mov_b64 s[38:39], vcc")
        a("ds_write_b64 v6, v[20:21]")
        if j==4: a("s_mov_b64 exec, s[36:37]")
        else:
            if j==0: a("s_mov_b64 s[36:37], exec"); a("s_andn2_b64 exec, exec, s[38:39]")
            a("ds_write_b64 v7, v[22:23]")
            if j==0: a("s_mov_b64 exec, s[36:37]")
    a("s_waitcnt lgkmcnt(0)")
    a("v_lshlrev_b32 v3, 3, v1"); a("v_add_u32 v3, v3, v2")
    for j in range(8): a(f"ds_read_b64 v[{X[j][0]}:{X[j][1]}], v3 offset:{512*j}")
    a("s_waitcnt lgkmcnt(0)")
    fft512(a,1)
    a("v_lshlrev_b32 v9, 11, v8"); a("v_lshlrev_b32 v10, 1, v7"); a("v_add_u32 v9, v9, v10")
    for j in range(8):
        a(f"buffer_load_ushort v{T[j][0]}, v9, s[4:7], 0 offen offset:{128*j}"); a(f"buffer_load_ushort v{T[j][1]}, v9, s[4:7], 0 offen offset:{1024+128*j}")
    a("s_waitcnt vmcnt(0)")
    for j in range(8):
        for c in range(2):
            x=X[j][c]; t=T[j][c]
            bfr(a,x,x); a(f"v_lshlrev_b32 v{t}, 16, v{t}"); a(f"v_add_f32 v{x}, v{x}, v{t}"); a(f"v_cvt_pk_bf16_f32 v{x}, v{x}, v{x}")
            a(f"buffer_store_short v{x}, v9, s[12:15], 0 offen offset:{1024*c+128*j}"); a(f"v_lshlrev_b32 v{T[j][c]}, 16, v{x}")
    ln2rows(a,[T[j][0] for j in range(8)],[T[j][1] for j in range(8)])
    for j in range(8):
        for c in range(2):
            t=T[j][c]; a(f"v_lshrrev_b32 v{t}, 16, v{t}"); a(f"buffer_store_short v{t}, v9, s[40:43], 0 offen offset:{1024*c+128*j}")
    a.lab("K3_END"); a("s_endpgm")
    return a

def gemm(lab,which):
    a=A(); load_ptrs(a)
    if which==4:
        a("s_and_b32 s3, s2, 15"); a("s_lshr_b32 s36, s2, 4"); a("s_cmp_ge_u32 s36, 22"); a(f"s_cbranch_scc1 {lab}_END")
        srd(a,4,34,OFF_LN,2048*1024); srd(a,8,34,OFF_WG,1376*1024); srd(a,12,34,OFF_WU,1376*1024); srd(a,40,34,OFF_ACT,2048*2752)
        KS,ldA,ldB=512,1024,1024
        a("s_lshl_b32 s3, s3, 7"); a("s_lshl_b32 s36, s36, 6")
    else:
        a("s_and_b32 s3, s2, 15"); a("s_lshr_b32 s36, s2, 4"); a("s_cmp_ge_u32 s36, 8"); a(f"s_cbranch_scc1 {lab}_END")
        srd(a,4,34,OFF_ACT,2048*2752); srd(a,8,34,OFF_WD,512*2752); srd(a,12,34,OFF_H,2048*1024); srd(a,40,30,0,2048*1024)
        KS,ldA,ldB=1376,2752,2752
        a("s_lshl_b32 s3, s3, 7"); a("s_lshl_b32 s36, s36, 6")
    a("v_and_b32 v1, 63, v0"); a("v_lshrrev_b32 v2, 6, v0"); a("v_and_b32 v3, 1, v2"); a("v_lshrrev_b32 v4, 1, v2")
    a("v_lshlrev_b32 v3, 6, v3"); a("v_add_u32 v3, s3, v3")
    a("v_lshlrev_b32 v4, 5, v4"); a("v_add_u32 v4, s36, v4")
    a("v_and_b32 v5, 31, v1"); a("v_lshrrev_b32 v6, 5, v1"); a("v_lshlrev_b32 v6, 4, v6")
    a("v_add_u32 v7, v3, v5"); a(f"v_mul_u32_u24 v7, {ldA}, v7"); a("v_add_u32 v7, v7, v6"); a(f"v_add_u32 v8, {32*ldA}, v7")
    a("v_add_u32 v9, v4, v5"); a(f"v_mul_u32_u24 v9, {ldB}, v9"); a("v_add_u32 v9, v9, v6")
    KB=64 if which==4 else 32; RB=KB*2; ST=RB+16; CPR=RB//16; RPL=256//CPR; NA=128//RPL
    nB=(128 if which==4 else 64)//RPL; BUF=256*ST
    for r in range(64,128): a(f"v_mov_b32 v{r}, 0")
    lg=CPR.bit_length()-1
    a(f"v_lshrrev_b32 v10, {lg}, v0"); a(f"v_and_b32 v11, {CPR-1}, v0"); a("v_lshlrev_b32 v11, 4, v11")
    a(f"v_mul_u32_u24 v12, {ST}, v10"); a("v_add_u32 v12, v12, v11")
    a("v_add_u32 v13, s3, v10"); a(f"v_mul_u32_u24 v13, {ldA}, v13"); a("v_add_u32 v13, v13, v11")
    a("v_add_u32 v14, s36, v10"); a(f"v_mul_u32_u24 v14, {ldB}, v14"); a("v_add_u32 v14, v14, v11")
    a("v_sub_u32 v7, v3, s3"); a("v_add_u32 v7, v7, v5"); a(f"v_mul_u32_u24 v7, {ST}, v7"); a("v_add_u32 v7, v7, v6")
    a("v_sub_u32 v9, v4, s36"); a("v_add_u32 v9, v9, v5"); a(f"v_mul_u32_u24 v9, {ST}, v9"); a("v_add_u32 v9, v9, v6"); a(f"v_add_u32 v9, {128*ST}, v9")
    a(f"v_add_u32 v15, {BUF}, v12"); a(f"v_add_u32 v8, {BUF}, v7"); a(f"v_add_u32 v10, {BUF}, v9")
    def gl():
        for j in range(NA): a(f"buffer_load_dwordx4 v[{16+4*j}:{19+4*j}], v13, s[4:7], s37 offen offset:{0}") if False else None
        for j in range(NA):
            a(f"s_add_u32 s38, s37, {j*RPL*ldA}"); a(f"buffer_load_dwordx4 v[{16+4*j}:{19+4*j}], v13, s[4:7], s38 offen")
        for j in range(nB):
            h=nB//2; sr="s[8:11]" if (which==5 or j<h) else "s[12:15]"; jj=j if (which==5 or j<h) else j-h
            a(f"s_add_u32 s38, s37, {jj*RPL*ldB}"); a(f"buffer_load_dwordx4 v[{32+4*j}:{35+4*j}], v14, {sr}, s38 offen")
    def sw(b):
        for j in range(NA): a(f"ds_write_b128 v{(12,15)[b]}, v[{16+4*j}:{19+4*j}] offset:{j*RPL*ST}")
        for j in range(nB): a(f"ds_write_b128 v{(12,15)[b]}, v[{32+4*j}:{35+4*j}] offset:{(128+j*RPL)*ST}")
    def comp(b):
        for ks in range(KB//16):
            o=ks*32; pa=(7,8)[b]; pb=(9,10)[b]
            a(f"ds_read_b128 v[48:51], v{pa} offset:{o}"); a(f"ds_read_b128 v[52:55], v{pa} offset:{o+32*ST}"); a(f"ds_read_b128 v[56:59], v{pb} offset:{o}")
            if which==4: a(f"ds_read_b128 v[60:63], v{pb} offset:{o+64*ST}")
            a("s_waitcnt lgkmcnt(0)")
            a("v_mfma_f32_32x32x16_bf16 v[64:79], v[48:51], v[56:59], v[64:79]"); a("v_mfma_f32_32x32x16_bf16 v[80:95], v[52:55], v[56:59], v[80:95]")
            if which==4:
                a("v_mfma_f32_32x32x16_bf16 v[96:111], v[48:51], v[60:63], v[96:111]"); a("v_mfma_f32_32x32x16_bf16 v[112:127], v[52:55], v[60:63], v[112:127]")
            a.nop(1)
    a("s_mov_b32 s37, 0"); gl(); a("s_waitcnt vmcnt(0)"); sw(0); a(f"s_add_u32 s37, s37, {RB}"); gl(); a("s_waitcnt lgkmcnt(0)"); a("s_barrier")
    a.lab(f"{lab}_L")
    for b in range(2):
        comp(b); a("s_waitcnt vmcnt(0)"); sw(1-b); a(f"s_add_u32 s37, s37, {RB}"); gl(); a("s_waitcnt lgkmcnt(0)"); a("s_barrier")
        a(f"s_cmp_gt_u32 s37, {KS*2+RB-1}"); a(f"s_cbranch_scc1 {lab}_D")
    a(f"s_branch {lab}_L"); a.lab(f"{lab}_D"); a("s_waitcnt vmcnt(0)")
    a.nop(15); a.nop(15)
    a("v_add_u32 v10, v4, v5")
    a("v_lshrrev_b32 v6, 5, v1"); a("v_lshlrev_b32 v6, 2, v6"); a("v_add_u32 v6, v6, v3")
    if which==4: a("v_cmp_gt_u32 vcc, 1376, v10"); a("s_and_saveexec_b64 s[38:39], vcc")
    if which==5:
        for i in range(2):
            for r in range(16):
                row=32*i+(r>>2)*8+(r&3)
                a(f"v_add_u32 v11, {row}, v6"); a("v_lshlrev_b32 v11, 10, v11"); a("v_lshlrev_b32 v12, 1, v10"); a(f"v_add_u32 v{16+16*i+r}, v11, v12")
                a(f"buffer_load_ushort v{96+16*i+r}, v{16+16*i+r}, s[12:15], 0 offen")
        a("s_waitcnt vmcnt(0)")
    for i in range(2):
        for r in range(16):
            row=32*i+(r>>2)*8+(r&3); g=64+16*i+r; u=96+16*i+r
            if which==4:
                a(f"v_add_u32 v11, {row}, v6")
                a("v_mul_u32_u24 v11, 2752, v11"); a("v_lshlrev_b32 v12, 1, v10"); a("v_add_u32 v11, v11, v12")
                bfr(a,g,g); bfr(a,u,u)
                a(f"v_mul_f32 v13, v{g}, v{g}"); a("v_mul_f32 v13, 0x3d372713, v13"); a(f"v_fma_f32 v13, v13, v{g}, v{g}")
                a("v_mul_f32 v13, 0x40135761, v13"); a("v_exp_f32 v13, v13"); a.nop(0); a("v_add_f32 v13, 1.0, v13"); a("v_rcp_f32 v13, v13"); a.nop(0)
                a(f"v_fma_f32 v13, -v13, v{g}, v{g}"); bfr(a,13,13); a(f"v_mul_f32 v{g}, v13, v{u}"); a(f"v_cvt_pk_bf16_f32 v{g}, v{g}, v{g}")
                a(f"buffer_store_short v{g}, v11, s[40:43], 0 offen")
            else:
                bfr(a,g,g); a(f"v_lshlrev_b32 v{u}, 16, v{u}")
                a(f"v_add_f32 v{g}, v{u}, v{g}"); a(f"v_cvt_pk_bf16_f32 v{g}, v{g}, v{g}"); a(f"buffer_store_short v{g}, v{16+16*i+r}, s[40:43], 0 offen")
    a.lab(f"{lab}_END"); a("s_endpgm")
    return a

ks=[("k1_kernel",K1(),(256+132,1,1),18432,80),("k2_kernel",K2(),(257,1,1),32768,96),("k3_kernel",K3(),(256,1,1),18432,80),
    ("k4_kernel",gemm("K4",4),(352,1,1),73728,128),("k5_kernel",gemm("K5",5),(128,1,1),40960,128)]
out="; generated\n"
for n,_,g,l,_ in ks: out+=f"; @launch kernel={n} grid=({g[0]},{g[1]},{g[2]}) block=(256,1,1) lds={l}\n"
out+='.amdgcn_target "amdgcn-amd-amdhsa--gfx950"\n.text\n'
for n,k,_,_,_ in ks: out+=f".globl {n}\n.p2align 8\n.type {n},@function\n{n}:\n"+k.txt()
out+='.section .rodata,"a"\n'
for n,_,_,_,nv in ks:
    out+=f".p2align 6\n.amdhsa_kernel {n}\n  .amdhsa_next_free_vgpr {nv}\n  .amdhsa_next_free_sgpr 48\n  .amdhsa_accum_offset {nv}\n  .amdhsa_group_segment_fixed_size 0\n  .amdhsa_kernarg_size 80\n  .amdhsa_user_sgpr_count 2\n  .amdhsa_user_sgpr_kernarg_segment_ptr 1\n  .amdhsa_system_sgpr_workgroup_id_x 1\n.end_amdhsa_kernel\n"
open(f"cdna_kernels/{NAME}.s","w").write(out)
```

```python
import sys; sys.path.insert(0,'gen')
from lib import *
NAME="sequential_preLN__spectral_gfnet__geglu_ffn__prompt"
OFF_XT=0; OFF_H=0x500000; OFF_LN=0x700000; OFF_ACT=0x900000; OFF_WG=0x1000000; OFF_WU=0x1200000; OFF_WD=0x1400000
X=[(16+2*i,17+2*i) for i in range(8)]
T=[(32+2*i,33+2*i) for i in range(16)]
TV=[64,65,66,67,68]

def reduce_sum(a,regs):
    for m in (32,16,8,4,2,1):
        a(f"v_xor_b32 v70, {m}, v1"); a("v_lshlrev_b32 v70, 2, v70")
        for i,r in enumerate(regs): a(f"ds_bpermute_b32 v{71+i}, v70, v{r}")
        a("s_waitcnt lgkmcnt(0)")
        for i,r in enumerate(regs): a(f"v_add_f32 v{r}, v{r}, v{71+i}")

def ln2rows(a,RA,RB):
    for R,acc in ((RA,76),(RB,77)):
        a(f"v_add_f32 v{acc}, v{R[0]}, v{R[1]}")
        for r in R[2:]: a(f"v_add_f32 v{acc}, v{acc}, v{r}")
    reduce_sum(a,[76,77])
    a("v_mul_f32 v76, 0x3b000000, v76"); a("v_mul_f32 v77, 0x3b000000, v77")
    for R,mean,acc in ((RA,76,78),(RB,77,79)):
        a(f"v_mov_b32 v{acc}, 0")
        for r in R:
            a(f"v_sub_f32 v70, v{r}, v{mean}"); a(f"v_fmac_f32 v{acc}, v70, v70")
    reduce_sum(a,[78,79])
    for R,mean,acc in ((RA,76,78),(RB,77,79)):
        a(f"v_mul_f32 v{acc}, 0x3b000000, v{acc}"); bfr(a,acc,acc)
        a(f"v_add_f32 v{acc}, 0x3727c5ac, v{acc}"); bfr(a,acc,acc)
        a(f"v_sqrt_f32 v{acc}, v{acc}"); a.nop(0); bfr(a,acc,acc)
        a(f"v_rcp_f32 v{acc}, v{acc}"); bfr(a,mean,mean)
        for r in R:
            a(f"v_sub_f32 v{r}, v{r}, v{mean}"); bfr(a,r,r); a(f"v_mul_f32 v{r}, v{r}, v{acc}"); bfr(a,r,r)

def fft512(a,s):
    dft8(a,X,T,s)
    a("v_lshlrev_b32 v3, 3, v1"); a("v_add_u32 v3, v3, v2")
    for k0 in range(8): a(f"ds_write_b64 v3, v[{X[k0][0]}:{X[k0][1]}] offset:{k0*512}")
    a("v_lshrrev_b32 v4, 3, v1"); a("v_and_b32 v5, 7, v1")
    a("v_lshlrev_b32 v6, 9, v4"); a("v_lshlrev_b32 v7, 3, v5"); a("v_add_u32 v6, v6, v7"); a("v_add_u32 v6, v6, v2")
    a("s_waitcnt lgkmcnt(0)")
    for n1 in range(8): a(f"ds_read_b64 v[{X[n1][0]}:{X[n1][1]}], v6 offset:{n1*64}")
    a("s_waitcnt lgkmcnt(0)")
    twiddle(a,X,8,4,64,s,TV); dft8(a,X,T,s)
    for k1 in range(8): a(f"ds_write_b64 v6, v[{X[k1][0]}:{X[k1][1]}] offset:{k1*64}")
    a("v_lshlrev_b32 v6, 6, v1"); a("v_add_u32 v6, v6, v2")
    a("s_waitcnt lgkmcnt(0)")
    for n0 in range(8): a(f"ds_read_b64 v[{X[n0][0]}:{X[n0][1]}], v6 offset:{n0*8}")
    a("v_lshlrev_b32 v7, 3, v5"); a("v_add_u32 v7, v7, v4")
    a("s_waitcnt lgkmcnt(0)")
    twiddle(a,X,8,7,512,s,TV); dft8(a,X,T,s)

def K1():
    a=A(); load_ptrs(a)
    a("s_cmp_ge_u32 s2, 256"); a("s_cbranch_scc1 K1_TR")
    srd(a,4,16,0,2048*1024); srd(a,8,34,OFF_XT,257*2048*8)
    a("v_and_b32 v1, 63, v0"); a("v_lshrrev_b32 v8, 6, v0")
    a("v_mul_u32_u24 v2, 4608, v8")
    a("s_lshl_b32 s3, s2, 2"); a("v_add_u32 v8, s3, v8")
    a("v_lshlrev_b32 v9, 11, v8"); a("v_lshlrev_b32 v10, 1, v1"); a("v_add_u32 v9, v9, v10")
    for j in range(8):
        a(f"buffer_load_ushort v{X[j][0]}, v9, s[4:7], 0 offen offset:{128*j}")
        a(f"buffer_load_ushort v{X[j][1]}, v9, s[4:7], 0 offen offset:{1024+128*j}")
    a("s_waitcnt vmcnt(0)")
    for j in range(8):
        a(f"v_lshlrev_b32 v{X[j][0]}, 16, v{X[j][0]}"); a(f"v_lshlrev_b32 v{X[j][1]}, 16, v{X[j][1]}")
    ln2rows(a,[X[j][0] for j in range(8)],[X[j][1] for j in range(8)])
    fft512(a,-1)
    a("v_lshlrev_b32 v6, 3, v7"); a("v_add_u32 v6, v6, v2")
    for k2 in range(8): a(f"ds_write_b64 v6, v[{X[k2][0]}:{X[k2][1]}] offset:{k2*512}")
    a("s_waitcnt lgkmcnt(0)")
    a("v_lshlrev_b32 v11, 4, v8")
    for j in range(5):
        a(f"v_add_u32 v4, {64*j}, v1"); a("v_sub_u32 v5, 512, v4"); a("v_and_b32 v5, 511, v5")
        a("v_lshlrev_b32 v6, 3, v4"); a("v_add_u32 v6, v6, v2"); a("v_lshlrev_b32 v7, 3, v5"); a("v_add_u32 v7, v7, v2")
        a("ds_read_b64 v[16:17], v6"); a("ds_read_b64 v[18:19], v7"); a("s_waitcnt lgkmcnt(0)")
        a("v_add_f32 v20, v16, v18"); a("v_sub_f32 v21, v17, v19"); a("v_add_f32 v22, v17, v19"); a("v_sub_f32 v23, v18, v16")
        for r in range(20,24): a(f"v_mul_f32 v{r}, 0.5, v{r}")
        a("v_lshlrev_b32 v4, 14, v4"); a("v_add_u32 v4, v4, v11")
        if j==4:
            a("v_cmp_eq_u32 vcc, 0, v1"); a("s_and_saveexec_b64 s[12:13], vcc")
        a("buffer_store_dwordx4 v[20:23], v4, s[8:11], 0 offen")
        if j==4: a("s_mov_b64 exec, s[12:13]")
    a("s_endpgm")
    a.lab("K1_TR")
    a("s_sub_u32 s3, s2, 256"); a("s_cmp_ge_u32 s3, 132"); a("s_cbranch_scc1 K1_END")
    a("v_and_b32 v1, 63, v0"); a("v_lshrrev_b32 v8, 6, v0"); a("s_lshl_b32 s3, s3, 2"); a("v_add_u32 v8, s3, v8")
    a.nop(0); a("v_readfirstlane_b32 s3, v8")
    a("s_cmp_ge_u32 s3, 352"); a("s_cbranch_scc1 K1_TD")
    a("s_cmp_ge_u32 s3, 176"); a("s_cbranch_scc1 K1_TU")
    srd(a,4,24,0,512*1376*2); srd(a,8,34,OFF_WG,1376*512*2); a("s_branch K1_TGU")
    a.lab("K1_TU"); a("s_sub_u32 s3, s3, 176"); srd(a,4,26,0,512*1376*2); srd(a,8,34,OFF_WU,1376*512*2)
    a.lab("K1_TGU")
    a("s_lshr_b32 s14, s3, 3"); a("s_and_b32 s15, s3, 7"); a("s_lshl_b32 s14, s14, 6"); a("s_lshl_b32 s15, s15, 6")
    a("s_mov_b32 s36, 2752"); a("s_mov_b32 s37, 1024"); a("s_mov_b32 s38, 1376"); a("s_branch K1_TC")
    a.lab("K1_TD"); a("s_sub_u32 s3, s3, 352"); srd(a,4,28,0,512*1376*2); srd(a,8,34,OFF_WD,2816*512)
    a("s_and_b32 s14, s3, 7"); a("s_lshr_b32 s15, s3, 3"); a("s_lshl_b32 s14, s14, 6"); a("s_lshl_b32 s15, s15, 6")
    a("s_mov_b32 s36, 1024"); a("s_mov_b32 s37, 2816"); a("s_mov_b32 s38, 512")
    a.lab("K1_TC")
    a("v_add_u32 v2, s14, v1"); a("v_cmp_gt_u32 vcc, s38, v2"); a("s_and_saveexec_b64 s[12:13], vcc")
    a("s_cbranch_execz K1_END")
    for kb in range(8):
        a(f"s_add_u32 s39, s15, {kb*8}"); a("s_mul_i32 s40, s39, s36"); a("v_lshlrev_b32 v3, 1, v2"); a("v_add_u32 v3, s40, v3")
        for i in range(8):
            a(f"buffer_load_ushort v{16+i}, v3, s[4:7], 0 offen"); a("v_add_u32 v3, s36, v3")
        a("s_waitcnt vmcnt(0)")
        for i in range(4): a(f"v_lshl_or_b32 v{24+i}, v{17+2*i}, 16, v{16+2*i}")
        a("v_mul_lo_u32 v3, v2, s37"); a("s_lshl_b32 s40, s39, 1"); a("v_add_u32 v3, s40, v3")
        a("buffer_store_dwordx4 v[24:27], v3, s[8:11], 0 offen")
    a.lab("K1_END"); a("s_endpgm")
    return a

def K2():
    a=A(); load_ptrs(a)
    a("s_cmp_ge_u32 s2, 257"); a("s_cbranch_scc1 K2_END")
    srd(a,4,34,OFF_XT,257*2048*8); srd(a,8,18,0,2048*257*2); srd(a,12,20,0,2048*257*2)
    a("s_lshl_b32 s3, s2, 14"); a("v_lshlrev_b32 v9, 3, v0"); a("v_add_u32 v9, s3, v9")
    for r in range(8): a(f"buffer_load_dwordx2 v[{X[r][0]}:{X[r][1]}], v9, s[4:7], 0 offen offset:{0}"); a("v_add_u32 v9, 2048, v9")
    a("s_waitcnt vmcnt(0)")
    def stages(s,first):
        buf=0; Ns=1
        for R in (8,8,8):
            if Ns>1:
                a("s_barrier")
                a(f"v_lshlrev_b32 v3, 3, v0");
                for r in range(8): a(f"ds_read_b64 v[{X[r][0]}:{X[r][1]}], v3 offset:{(1-buf)*16384+r*2048}")
                a(f"v_and_b32 v4, {Ns-1}, v0"); a("s_waitcnt lgkmcnt(0)")
                twiddle(a,X,8,4,Ns*8,s,TV)
            dft8(a,X,T,s)
            lg=Ns.bit_length()-1
            a(f"v_lshrrev_b32 v3, {lg}, v0"); a(f"v_lshlrev_b32 v3, {lg+3}, v3"); a(f"v_and_b32 v4, {Ns-1}, v0"); a("v_add_u32 v3, v3, v4"); a("v_lshlrev_b32 v3, 3, v3")
            for r in range(8): a(f"ds_write_b64 v3, v[{X[r][0]}:{X[r][1]}] offset:{buf*16384+r*Ns*8}")
            a("s_waitcnt lgkmcnt(0)")
            buf^=1; Ns*=8
        a("s_barrier")
        a("v_lshlrev_b32 v3, 3, v0")
        for q in range(8): a(f"ds_read_b64 v[{X[q][0]}:{X[q][1]}], v3 offset:{(1-buf)*16384+q*2048}")
        a("s_waitcnt lgkmcnt(0)")
        for h in range(2):
            Y=[X[h+2*r] for r in range(4)]
            a(f"v_add_u32 v4, {256*h}, v0"); twiddle(a,Y,4,4,2048,s,TV); dft4(a,Y,T,s)
    stages(-1,True)
    a("v_mul_u32_u24 v5, 514, v0"); a("s_lshl_b32 s3, s2, 1"); a("v_add_u32 v5, s3, v5")
    for q in range(8):
        a(f"buffer_load_ushort v{72+2*q}, v5, s[8:11], 0 offen"); a(f"buffer_load_ushort v{73+2*q}, v5, s[12:15], 0 offen"); a(f"v_add_u32 v5, {256*514}, v5")
    a("s_waitcnt vmcnt(0)")
    for q in range(8):
        c,sn=72+2*q,73+2*q; xr,xi=X[q]
        a(f"v_lshlrev_b32 v{c}, 16, v{c}"); a(f"v_lshlrev_b32 v{sn}, 16, v{sn}")
        a(f"v_mul_f32 v67, v{xi}, v{sn}"); a(f"v_mul_f32 v68, v{xi}, v{c}")
        a(f"v_fma_f32 v{xi}, v{xr}, v{sn}, v68"); a(f"v_fma_f32 v{xr}, v{xr}, v{c}, -v67")
    a("s_barrier")
    stages(1,False)
    a("s_lshl_b32 s3, s2, 14"); a("v_lshlrev_b32 v9, 3, v0"); a("v_add_u32 v9, s3, v9")
    for q in range(8):
        a(f"v_mul_f32 v{X[q][0]}, 0x35800000, v{X[q][0]}"); a(f"v_mul_f32 v{X[q][1]}, 0x35800000, v{X[q][1]}")
        a(f"buffer_store_dwordx2 v[{X[q][0]}:{X[q][1]}], v9, s[4:7], 0 offen"); a("v_add_u32 v9, 2048, v9")
    a.lab("K2_END"); a("s_endpgm")
    return a

def K3():
    a=A(); load_ptrs(a)
    a("s_cmp_ge_u32 s2, 256"); a("s_cbranch_scc1 K3_END")
    srd(a,4,16,0,2048*1024); srd(a,8,34,OFF_XT,257*2048*8); srd(a,12,34,OFF_H,2048*1024); srd(a,40,34,OFF_LN,2048*1024)
    a("v_and_b32 v1, 63, v0"); a("v_lshrrev_b32 v8, 6, v0"); a("v_mul_u32_u24 v2, 4608, v8")
    a("s_lshl_b32 s3, s2, 2"); a("v_add_u32 v8, s3, v8"); a("v_lshlrev_b32 v11, 4, v8")
    for j in range(5):
        a(f"v_add_u32 v4, {64*j}, v1"); a("v_lshlrev_b32 v5, 14, v4"); a("v_add_u32 v5, v5, v11")
        a("buffer_load_dwordx4 v[16:19], v5, s[8:11], 0 offen"); a("s_waitcnt vmcnt(0)")
        a("v_sub_f32 v20, v16, v19"); a("v_add_f32 v21, v17, v18"); a("v_add_f32 v22, v16, v19"); a("v_sub_f32 v23, v18, v17")
        a("v_lshlrev_b32 v6, 3, v4"); a("v_add_u32 v6, v6, v2"); a("v_sub_u32 v7, 512, v4"); a("v_lshlrev_b32 v7, 3, v7"); a("v_add_u32 v7, v7, v2")
        if j==0 or j==4:
            a("v_and_b32 v5, 255, v4"); a("v_cmp_eq_u32 vcc, 0, v5"); a.nop(1)
            a("v_cndmask_b32 v20, v20, v16, vcc"); a("v_cndmask_b32 v21, v21, v18, vcc")
            if j==4: a("s_and_saveexec_b64 s[36:37], vcc")
            else: a("s_mov_b64 s[38:39], vcc")
        a("ds_write_b64 v6, v[20:21]")
        if j==4: a("s_mov_b64 exec, s[36:37]")
        else:
            if j==0: a("s_mov_b64 s[36:37], exec"); a("s_andn2_b64 exec, exec, s[38:39]")
            a("ds_write_b64 v7, v[22:23]")
            if j==0: a("s_mov_b64 exec, s[36:37]")
    a("s_waitcnt lgkmcnt(0)")
    a("v_lshlrev_b32 v3, 3, v1"); a("v_add_u32 v3, v3, v2")
    for j in range(8): a(f"ds_read_b64 v[{X[j][0]}:{X[j][1]}], v3 offset:{512*j}")
    a("s_waitcnt lgkmcnt(0)")
    fft512(a,1)
    a("v_lshlrev_b32 v9, 11, v8"); a("v_lshlrev_b32 v10, 1, v7"); a("v_add_u32 v9, v9, v10")
    for j in range(8):
        a(f"buffer_load_ushort v{T[j][0]}, v9, s[4:7], 0 offen offset:{128*j}"); a(f"buffer_load_ushort v{T[j][1]}, v9, s[4:7], 0 offen offset:{1024+128*j}")
    a("s_waitcnt vmcnt(0)")
    for j in range(8):
        for c in range(2):
            x=X[j][c]; t=T[j][c]
            bfr(a,x,x); a(f"v_lshlrev_b32 v{t}, 16, v{t}"); a(f"v_add_f32 v{x}, v{x}, v{t}"); a(f"v_cvt_pk_bf16_f32 v{x}, v{x}, v{x}")
            a(f"buffer_store_short v{x}, v9, s[12:15], 0 offen offset:{1024*c+128*j}"); a(f"v_lshlrev_b32 v{T[j][c]}, 16, v{x}")
    ln2rows(a,[T[j][0] for j in range(8)],[T[j][1] for j in range(8)])
    for j in range(8):
        for c in range(2):
            t=T[j][c]; a(f"v_lshrrev_b32 v{t}, 16, v{t}"); a(f"buffer_store_short v{t}, v9, s[40:43], 0 offen offset:{1024*c+128*j}")
    a.lab("K3_END"); a("s_endpgm")
    return a

def gemm(lab,which):
    a=A(); load_ptrs(a)
    if which==4:
        a("s_and_b32 s3, s2, 15"); a("s_lshr_b32 s36, s2, 4"); a("s_cmp_ge_u32 s36, 22"); a(f"s_cbranch_scc1 {lab}_END")
        srd(a,4,34,OFF_LN,2048*1024); srd(a,8,34,OFF_WG,1376*1024); srd(a,12,34,OFF_WU,1376*1024); srd(a,40,34,OFF_ACT,2048*2752)
        KS,ldA,ldB=512,1024,1024
        a("s_lshl_b32 s3, s3, 7"); a("s_lshl_b32 s36, s36, 6")
    else:
        a("s_and_b32 s3, s2, 15"); a("s_lshr_b32 s36, s2, 4"); a("s_cmp_ge_u32 s36, 8"); a(f"s_cbranch_scc1 {lab}_END")
        srd(a,4,34,OFF_ACT,2048*2752); srd(a,8,34,OFF_WD,512*2816); srd(a,12,34,OFF_H,2048*1024); srd(a,40,30,0,2048*1024)
        KS,ldA,ldB=1408,2752,2816
        a("s_lshl_b32 s3, s3, 7"); a("s_lshl_b32 s36, s36, 6")
    a("v_and_b32 v1, 63, v0"); a("v_lshrrev_b32 v2, 6, v0"); a("v_and_b32 v3, 1, v2"); a("v_lshrrev_b32 v4, 1, v2")
    a("v_lshlrev_b32 v3, 6, v3"); a("v_add_u32 v3, s3, v3")
    a("v_lshlrev_b32 v4, 5, v4"); a("v_add_u32 v4, s36, v4")
    a("v_and_b32 v5, 31, v1"); a("v_lshrrev_b32 v6, 5, v1"); a("v_lshlrev_b32 v6, 4, v6")
    a("v_add_u32 v7, v3, v5"); a(f"v_mul_u32_u24 v7, {ldA}, v7"); a("v_add_u32 v7, v7, v6"); a(f"v_add_u32 v8, {32*ldA}, v7")
    a("v_add_u32 v9, v4, v5"); a(f"v_mul_u32_u24 v9, {ldB}, v9"); a("v_add_u32 v9, v9, v6")
    KB=64; RB=KB*2; ST=RB+16; CPR=RB//16; RPL=256//CPR; NA=128//RPL
    nB=(128 if which==4 else 64)//RPL; BUF=256*ST
    for r in range(64,128): a(f"v_mov_b32 v{r}, 0")
    lg=CPR.bit_length()-1
    a(f"v_lshrrev_b32 v10, {lg}, v0"); a(f"v_and_b32 v11, {CPR-1}, v0"); a("v_lshlrev_b32 v11, 4, v11")
    a(f"v_mul_u32_u24 v12, {ST}, v10"); a("v_add_u32 v12, v12, v11")
    a("v_add_u32 v13, s3, v10"); a(f"v_mul_u32_u24 v13, {ldA}, v13"); a("v_add_u32 v13, v13, v11")
    a("v_add_u32 v14, s36, v10"); a(f"v_mul_u32_u24 v14, {ldB}, v14"); a("v_add_u32 v14, v14, v11")
    a("v_sub_u32 v7, v3, s3"); a("v_add_u32 v7, v7, v5"); a(f"v_mul_u32_u24 v7, {ST}, v7"); a("v_add_u32 v7, v7, v6")
    a("v_sub_u32 v9, v4, s36"); a("v_add_u32 v9, v9, v5"); a(f"v_mul_u32_u24 v9, {ST}, v9"); a("v_add_u32 v9, v9, v6"); a(f"v_add_u32 v9, {128*ST}, v9")
    a(f"v_add_u32 v15, {BUF}, v12"); a(f"v_add_u32 v8, {BUF}, v7"); a(f"v_add_u32 v10, {BUF}, v9")
    def gl(S=0):
        for j in range(NA): a(f"buffer_load_dwordx4 v[{16+4*j}:{19+4*j}], v13, s[4:7], s37 offen offset:{0}") if False else None
        for j in range(NA):
            a(f"s_add_u32 s38, s37, {j*RPL*ldA}"); a(f"buffer_load_dwordx4 v[{S+16+4*j}:{S+19+4*j}], v13, s[4:7], s38 offen")
        for j in range(nB):
            h=nB//2; sr="s[8:11]" if (which==5 or j<h) else "s[12:15]"; jj=j if (which==5 or j<h) else j-h
            a(f"s_add_u32 s38, s37, {jj*RPL*ldB}"); a(f"buffer_load_dwordx4 v[{S+32+4*j}:{S+35+4*j}], v14, {sr}, s38 offen")
    def sw(b,S=0):
        for j in range(NA): a(f"ds_write_b128 v{(12,15)[b]}, v[{S+16+4*j}:{S+19+4*j}] offset:{j*RPL*ST}")
        for j in range(nB): a(f"ds_write_b128 v{(12,15)[b]}, v[{S+32+4*j}:{S+35+4*j}] offset:{(128+j*RPL)*ST}")
    def comp(b):
        for ks in range(KB//16):
            o=ks*32; pa=(7,8)[b]; pb=(9,10)[b]
            a(f"ds_read_b128 v[48:51], v{pa} offset:{o}"); a(f"ds_read_b128 v[52:55], v{pa} offset:{o+32*ST}"); a(f"ds_read_b128 v[56:59], v{pb} offset:{o}")
            if which==4: a(f"ds_read_b128 v[60:63], v{pb} offset:{o+64*ST}")
            a("s_waitcnt lgkmcnt(0)")
            a("v_mfma_f32_32x32x16_bf16 v[64:79], v[48:51], v[56:59], v[64:79]"); a("v_mfma_f32_32x32x16_bf16 v[80:95], v[52:55], v[56:59], v[80:95]")
            if which==4:
                a("v_mfma_f32_32x32x16_bf16 v[96:111], v[48:51], v[60:63], v[96:111]"); a("v_mfma_f32_32x32x16_bf16 v[112:127], v[52:55], v[60:63], v[112:127]")
            a.nop(1)
    nl=NA+nB; adv=f"s_add_u32 s37, s37, {RB}"
    a("s_mov_b32 s37, 0"); gl(0); a(adv); gl(112); a(f"s_waitcnt vmcnt({nl})"); sw(0,0); a("s_waitcnt lgkmcnt(0)"); a(adv); gl(0); a("s_barrier")
    a.lab(f"{lab}_L")
    for b in range(2):
        S=112*(1-b)
        comp(b); a(f"s_waitcnt vmcnt({nl})"); sw(1-b,S); a("s_waitcnt lgkmcnt(0)"); a(adv); gl(S); a("s_barrier")
        a(f"s_cmp_gt_u32 s37, {KS*2+2*RB-1}"); a(f"s_cbranch_scc1 {lab}_D")
    a(f"s_branch {lab}_L"); a.lab(f"{lab}_D"); a("s_waitcnt vmcnt(0)")
    a.nop(15); a.nop(15)
    a("v_add_u32 v10, v4, v5")
    a("v_lshrrev_b32 v6, 5, v1"); a("v_lshlrev_b32 v6, 2, v6"); a("v_add_u32 v6, v6, v3")
    if which==4: a("v_cmp_gt_u32 vcc, 1376, v10"); a("s_and_saveexec_b64 s[38:39], vcc")
    if which==5:
        for i in range(2):
            for r in range(16):
                row=32*i+(r>>2)*8+(r&3)
                a(f"v_add_u32 v11, {row}, v6"); a("v_lshlrev_b32 v11, 10, v11"); a("v_lshlrev_b32 v12, 1, v10"); a(f"v_add_u32 v{16+16*i+r}, v11, v12")
                a(f"buffer_load_ushort v{96+16*i+r}, v{16+16*i+r}, s[12:15], 0 offen")
        a("s_waitcnt vmcnt(0)")
    for i in range(2):
        for r in range(16):
            row=32*i+(r>>2)*8+(r&3); g=64+16*i+r; u=96+16*i+r
            if which==4:
                a(f"v_add_u32 v11, {row}, v6")
                a("v_mul_u32_u24 v11, 2752, v11"); a("v_lshlrev_b32 v12, 1, v10"); a("v_add_u32 v11, v11, v12")
                bfr(a,g,g); bfr(a,u,u)
                a(f"v_mul_f32 v13, v{g}, v{g}"); a("v_mul_f32 v13, 0x3d372713, v13"); a(f"v_fma_f32 v13, v13, v{g}, v{g}")
                a("v_mul_f32 v13, 0x40135761, v13"); a("v_exp_f32 v13, v13"); a.nop(0); a("v_add_f32 v13, 1.0, v13"); a("v_rcp_f32 v13, v13"); a.nop(0)
                a(f"v_fma_f32 v13, -v13, v{g}, v{g}"); bfr(a,13,13); a(f"v_mul_f32 v{g}, v13, v{u}"); a(f"v_cvt_pk_bf16_f32 v{g}, v{g}, v{g}")
                a(f"buffer_store_short v{g}, v11, s[40:43], 0 offen")
            else:
                bfr(a,g,g); a(f"v_lshlrev_b32 v{u}, 16, v{u}")
                a(f"v_add_f32 v{g}, v{u}, v{g}"); a(f"v_cvt_pk_bf16_f32 v{g}, v{g}, v{g}"); a(f"buffer_store_short v{g}, v{16+16*i+r}, s[40:43], 0 offen")
    a.lab(f"{lab}_END"); a("s_endpgm")
    return a

ks=[("k1_kernel",K1(),(256+132,1,1),18432,80),("k2_kernel",K2(),(257,1,1),32768,96),("k3_kernel",K3(),(256,1,1),18432,80),
    ("k4_kernel",gemm("K4",4),(352,1,1),73728,160),("k5_kernel",gemm("K5",5),(128,1,1),73728,160)]
out="; generated\n"
for n,_,g,l,_ in ks: out+=f"; @launch kernel={n} grid=({g[0]},{g[1]},{g[2]}) block=(256,1,1) lds={l}\n"
out+='.amdgcn_target "amdgcn-amd-amdhsa--gfx950"\n.text\n'
for n,k,_,_,_ in ks: out+=f".globl {n}\n.p2align 8\n.type {n},@function\n{n}:\n"+k.txt()
out+='.section .rodata,"a"\n'
for n,_,_,_,nv in ks:
    out+=f".p2align 6\n.amdhsa_kernel {n}\n  .amdhsa_next_free_vgpr {nv}\n  .amdhsa_next_free_sgpr 48\n  .amdhsa_accum_offset {nv}\n  .amdhsa_group_segment_fixed_size 0\n  .amdhsa_kernarg_size 80\n  .amdhsa_user_sgpr_count 2\n  .amdhsa_user_sgpr_kernarg_segment_ptr 1\n  .amdhsa_system_sgpr_workgroup_id_x 1\n.end_amdhsa_kernel\n"
open(f"cdna_kernels/{NAME}.s","w").write(out)
```

```python
import sys; sys.path.insert(0,'gen')
from lib import *
NAME="sequential_preLN__spectral_gfnet__geglu_ffn__prompt"
OFF_XT=0; OFF_H=0x500000; OFF_LN=0x700000; OFF_ACT=0x900000; OFF_WG=0x1000000; OFF_WU=0x1200000; OFF_WD=0x1400000
X=[(16+2*i,17+2*i) for i in range(8)]
T=[(32+2*i,33+2*i) for i in range(16)]
TV=[64,65,66,67,68]

def reduce_sum(a,regs):
    for m in (32,16,8,4,2,1):
        a(f"v_xor_b32 v70, {m}, v1"); a("v_lshlrev_b32 v70, 2, v70")
        for i,r in enumerate(regs): a(f"ds_bpermute_b32 v{71+i}, v70, v{r}")
        a("s_waitcnt lgkmcnt(0)")
        for i,r in enumerate(regs): a(f"v_add_f32 v{r}, v{r}, v{71+i}")

def ln2rows(a,RA,RB):
    for R,acc in ((RA,76),(RB,77)):
        a(f"v_add_f32 v{acc}, v{R[0]}, v{R[1]}")
        for r in R[2:]: a(f"v_add_f32 v{acc}, v{acc}, v{r}")
    reduce_sum(a,[76,77])
    a("v_mul_f32 v76, 0x3b000000, v76"); a("v_mul_f32 v77, 0x3b000000, v77")
    for R,mean,acc in ((RA,76,78),(RB,77,79)):
        a(f"v_mov_b32 v{acc}, 0")
        for r in R:
            a(f"v_sub_f32 v70, v{r}, v{mean}"); a(f"v_fmac_f32 v{acc}, v70, v70")
    reduce_sum(a,[78,79])
    for R,mean,acc in ((RA,76,78),(RB,77,79)):
        a(f"v_mul_f32 v{acc}, 0x3b000000, v{acc}"); bfr(a,acc,acc)
        a(f"v_add_f32 v{acc}, 0x3727c5ac, v{acc}"); bfr(a,acc,acc)
        a(f"v_sqrt_f32 v{acc}, v{acc}"); a.nop(0); bfr(a,acc,acc)
        a(f"v_rcp_f32 v{acc}, v{acc}"); bfr(a,mean,mean)
        for r in R:
            a(f"v_sub_f32 v{r}, v{r}, v{mean}"); bfr(a,r,r); a(f"v_mul_f32 v{r}, v{r}, v{acc}"); bfr(a,r,r)

def fft512(a,s):
    dft8(a,X,T,s)
    a("v_lshlrev_b32 v3, 3, v1"); a("v_add_u32 v3, v3, v2")
    for k0 in range(8): a(f"ds_write_b64 v3, v[{X[k0][0]}:{X[k0][1]}] offset:{k0*512}")
    a("v_lshrrev_b32 v4, 3, v1"); a("v_and_b32 v5, 7, v1")
    a("v_lshlrev_b32 v6, 9, v4"); a("v_lshlrev_b32 v7, 3, v5"); a("v_add_u32 v6, v6, v7"); a("v_add_u32 v6, v6, v2")
    a("s_waitcnt lgkmcnt(0)")
    for n1 in range(8): a(f"ds_read_b64 v[{X[n1][0]}:{X[n1][1]}], v6 offset:{n1*64}")
    a("s_waitcnt lgkmcnt(0)")
    twiddle(a,X,8,4,64,s,TV); dft8(a,X,T,s)
    for k1 in range(8): a(f"ds_write_b64 v6, v[{X[k1][0]}:{X[k1][1]}] offset:{k1*64}")
    a("v_lshlrev_b32 v6, 6, v1"); a("v_add_u32 v6, v6, v2")
    a("s_waitcnt lgkmcnt(0)")
    for n0 in range(8): a(f"ds_read_b64 v[{X[n0][0]}:{X[n0][1]}], v6 offset:{n0*8}")
    a("v_lshlrev_b32 v7, 3, v5"); a("v_add_u32 v7, v7, v4")
    a("s_waitcnt lgkmcnt(0)")
    twiddle(a,X,8,7,512,s,TV); dft8(a,X,T,s)

def K1():
    a=A(); load_ptrs(a)
    a("s_cmp_ge_u32 s2, 256"); a("s_cbranch_scc1 K1_TR")
    srd(a,4,16,0,2048*1024); srd(a,8,34,OFF_XT,257*2048*8)
    a("v_and_b32 v1, 63, v0"); a("v_lshrrev_b32 v8, 6, v0")
    a("v_mul_u32_u24 v2, 4608, v8")
    a("s_lshl_b32 s3, s2, 2"); a("v_add_u32 v8, s3, v8")
    a("v_lshlrev_b32 v9, 11, v8"); a("v_lshlrev_b32 v10, 1, v1"); a("v_add_u32 v9, v9, v10")
    for j in range(8):
        a(f"buffer_load_ushort v{X[j][0]}, v9, s[4:7], 0 offen offset:{128*j}")
        a(f"buffer_load_ushort v{X[j][1]}, v9, s[4:7], 0 offen offset:{1024+128*j}")
    a("s_waitcnt vmcnt(0)")
    for j in range(8):
        a(f"v_lshlrev_b32 v{X[j][0]}, 16, v{X[j][0]}"); a(f"v_lshlrev_b32 v{X[j][1]}, 16, v{X[j][1]}")
    ln2rows(a,[X[j][0] for j in range(8)],[X[j][1] for j in range(8)])
    fft512(a,-1)
    a("v_lshlrev_b32 v6, 3, v7"); a("v_add_u32 v6, v6, v2")
    for k2 in range(8): a(f"ds_write_b64 v6, v[{X[k2][0]}:{X[k2][1]}] offset:{k2*512}")
    a("s_waitcnt lgkmcnt(0)")
    a("v_lshlrev_b32 v11, 4, v8")
    for j in range(5):
        a(f"v_add_u32 v4, {64*j}, v1"); a("v_sub_u32 v5, 512, v4"); a("v_and_b32 v5, 511, v5")
        a("v_lshlrev_b32 v6, 3, v4"); a("v_add_u32 v6, v6, v2"); a("v_lshlrev_b32 v7, 3, v5"); a("v_add_u32 v7, v7, v2")
        a("ds_read_b64 v[16:17], v6"); a("ds_read_b64 v[18:19], v7"); a("s_waitcnt lgkmcnt(0)")
        a("v_add_f32 v20, v16, v18"); a("v_sub_f32 v21, v17, v19"); a("v_add_f32 v22, v17, v19"); a("v_sub_f32 v23, v18, v16")
        for r in range(20,24): a(f"v_mul_f32 v{r}, 0.5, v{r}")
        a("v_lshlrev_b32 v4, 14, v4"); a("v_add_u32 v4, v4, v11")
        if j==4:
            a("v_cmp_eq_u32 vcc, 0, v1"); a("s_and_saveexec_b64 s[12:13], vcc")
        a("buffer_store_dwordx4 v[20:23], v4, s[8:11], 0 offen")
        if j==4: a("s_mov_b64 exec, s[12:13]")
    a("s_endpgm")
    a.lab("K1_TR")
    a("s_sub_u32 s3, s2, 256"); a("s_cmp_ge_u32 s3, 132"); a("s_cbranch_scc1 K1_END")
    a("v_and_b32 v1, 63, v0"); a("v_lshrrev_b32 v8, 6, v0"); a("s_lshl_b32 s3, s3, 2"); a("v_add_u32 v8, s3, v8")
    a.nop(0); a("v_readfirstlane_b32 s3, v8")
    a("s_cmp_ge_u32 s3, 352"); a("s_cbranch_scc1 K1_TD")
    a("s_cmp_ge_u32 s3, 176"); a("s_cbranch_scc1 K1_TU")
    srd(a,4,24,0,512*1376*2); srd(a,8,34,OFF_WG,1376*512*2); a("s_branch K1_TGU")
    a.lab("K1_TU"); a("s_sub_u32 s3, s3, 176"); srd(a,4,26,0,512*1376*2); srd(a,8,34,OFF_WU,1376*512*2)
    a.lab("K1_TGU")
    a("s_lshr_b32 s14, s3, 3"); a("s_and_b32 s15, s3, 7"); a("s_lshl_b32 s14, s14, 6"); a("s_lshl_b32 s15, s15, 6")
    a("s_mov_b32 s36, 2752"); a("s_mov_b32 s37, 1024"); a("s_mov_b32 s38, 1376"); a("s_branch K1_TC")
    a.lab("K1_TD"); a("s_sub_u32 s3, s3, 352"); srd(a,4,28,0,512*1376*2); srd(a,8,34,OFF_WD,2816*512)
    a("s_and_b32 s14, s3, 7"); a("s_lshr_b32 s15, s3, 3"); a("s_lshl_b32 s14, s14, 6"); a("s_lshl_b32 s15, s15, 6")
    a("s_mov_b32 s36, 1024"); a("s_mov_b32 s37, 2816"); a("s_mov_b32 s38, 512")
    a.lab("K1_TC")
    a("v_add_u32 v2, s14, v1"); a("v_cmp_gt_u32 vcc, s38, v2"); a("s_and_saveexec_b64 s[12:13], vcc")
    a("s_cbranch_execz K1_END")
    for kb in range(8):
        a(f"s_add_u32 s39, s15, {kb*8}"); a("s_mul_i32 s40, s39, s36"); a("v_lshlrev_b32 v3, 1, v2"); a("v_add_u32 v3, s40, v3")
        for i in range(8):
            a(f"buffer_load_ushort v{16+i}, v3, s[4:7], 0 offen"); a("v_add_u32 v3, s36, v3")
        a("s_waitcnt vmcnt(0)")
        for i in range(4): a(f"v_lshl_or_b32 v{24+i}, v{17+2*i}, 16, v{16+2*i}")
        a("v_mul_lo_u32 v3, v2, s37"); a("s_lshl_b32 s40, s39, 1"); a("v_add_u32 v3, s40, v3")
        a("buffer_store_dwordx4 v[24:27], v3, s[8:11], 0 offen")
    a.lab("K1_END"); a("s_endpgm")
    return a

def K2():
    a=A(); load_ptrs(a)
    a("s_cmp_ge_u32 s2, 257"); a("s_cbranch_scc1 K2_END")
    srd(a,4,34,OFF_XT,257*2048*8); srd(a,8,18,0,2048*257*2); srd(a,12,20,0,2048*257*2)
    a("s_lshl_b32 s3, s2, 14"); a("v_lshlrev_b32 v9, 3, v0"); a("v_add_u32 v9, s3, v9")
    for r in range(8): a(f"buffer_load_dwordx2 v[{X[r][0]}:{X[r][1]}], v9, s[4:7], 0 offen offset:{0}"); a("v_add_u32 v9, 2048, v9")
    a("s_waitcnt vmcnt(0)")
    def stages(s,first):
        buf=0; Ns=1
        for R in (8,8,8):
            if Ns>1:
                a("s_barrier")
                a(f"v_lshlrev_b32 v3, 3, v0");
                for r in range(8): a(f"ds_read_b64 v[{X[r][0]}:{X[r][1]}], v3 offset:{(1-buf)*16384+r*2048}")
                a(f"v_and_b32 v4, {Ns-1}, v0"); a("s_waitcnt lgkmcnt(0)")
                twiddle(a,X,8,4,Ns*8,s,TV)
            dft8(a,X,T,s)
            lg=Ns.bit_length()-1
            a(f"v_lshrrev_b32 v3, {lg}, v0"); a(f"v_lshlrev_b32 v3, {lg+3}, v3"); a(f"v_and_b32 v4, {Ns-1}, v0"); a("v_add_u32 v3, v3, v4"); a("v_lshlrev_b32 v3, 3, v3")
            for r in range(8): a(f"ds_write_b64 v3, v[{X[r][0]}:{X[r][1]}] offset:{buf*16384+r*Ns*8}")
            a("s_waitcnt lgkmcnt(0)")
            buf^=1; Ns*=8
        a("s_barrier")
        a("v_lshlrev_b32 v3, 3, v0")
        for q in range(8): a(f"ds_read_b64 v[{X[q][0]}:{X[q][1]}], v3 offset:{(1-buf)*16384+q*2048}")
        a("s_waitcnt lgkmcnt(0)")
        for h in range(2):
            Y=[X[h+2*r] for r in range(4)]
            a(f"v_add_u32 v4, {256*h}, v0"); twiddle(a,Y,4,4,2048,s,TV); dft4(a,Y,T,s)
    stages(-1,True)
    a("v_mul_u32_u24 v5, 514, v0"); a("s_lshl_b32 s3, s2, 1"); a("v_add_u32 v5, s3, v5")
    for q in range(8):
        a(f"buffer_load_ushort v{72+2*q}, v5, s[8:11], 0 offen"); a(f"buffer_load_ushort v{73+2*q}, v5, s[12:15], 0 offen"); a(f"v_add_u32 v5, {256*514}, v5")
    a("s_waitcnt vmcnt(0)")
    for q in range(8):
        c,sn=72+2*q,73+2*q; xr,xi=X[q]
        a(f"v_lshlrev_b32 v{c}, 16, v{c}"); a(f"v_lshlrev_b32 v{sn}, 16, v{sn}")
        a(f"v_mul_f32 v67, v{xi}, v{sn}"); a(f"v_mul_f32 v68, v{xi}, v{c}")
        a(f"v_fma_f32 v{xi}, v{xr}, v{sn}, v68"); a(f"v_fma_f32 v{xr}, v{xr}, v{c}, -v67")
    a("s_barrier")
    stages(1,False)
    a("s_lshl_b32 s3, s2, 14"); a("v_lshlrev_b32 v9, 3, v0"); a("v_add_u32 v9, s3, v9")
    for q in range(8):
        a(f"v_mul_f32 v{X[q][0]}, 0x35800000, v{X[q][0]}"); a(f"v_mul_f32 v{X[q][1]}, 0x35800000, v{X[q][1]}")
        a(f"buffer_store_dwordx2 v[{X[q][0]}:{X[q][1]}], v9, s[4:7], 0 offen"); a("v_add_u32 v9, 2048, v9")
    a.lab("K2_END"); a("s_endpgm")
    return a

def K3():
    a=A(); load_ptrs(a)
    a("s_cmp_ge_u32 s2, 256"); a("s_cbranch_scc1 K3_END")
    srd(a,4,16,0,2048*1024); srd(a,8,34,OFF_XT,257*2048*8); srd(a,12,34,OFF_H,2048*1024); srd(a,40,34,OFF_LN,2048*1024)
    a("v_and_b32 v1, 63, v0"); a("v_lshrrev_b32 v8, 6, v0"); a("v_mul_u32_u24 v2, 4608, v8")
    a("s_lshl_b32 s3, s2, 2"); a("v_add_u32 v8, s3, v8"); a("v_lshlrev_b32 v11, 4, v8")
    for j in range(5):
        a(f"v_add_u32 v4, {64*j}, v1"); a("v_lshlrev_b32 v5, 14, v4"); a("v_add_u32 v5, v5, v11")
        a("buffer_load_dwordx4 v[16:19], v5, s[8:11], 0 offen"); a("s_waitcnt vmcnt(0)")
        a("v_sub_f32 v20, v16, v19"); a("v_add_f32 v21, v17, v18"); a("v_add_f32 v22, v16, v19"); a("v_sub_f32 v23, v18, v17")
        a("v_lshlrev_b32 v6, 3, v4"); a("v_add_u32 v6, v6, v2"); a("v_sub_u32 v7, 512, v4"); a("v_lshlrev_b32 v7, 3, v7"); a("v_add_u32 v7, v7, v2")
        if j==0 or j==4:
            a("v_and_b32 v5, 255, v4"); a("v_cmp_eq_u32 vcc, 0, v5"); a.nop(1)
            a("v_cndmask_b32 v20, v20, v16, vcc"); a("v_cndmask_b32 v21, v21, v18, vcc")
            if j==4: a("s_and_saveexec_b64 s[36:37], vcc")
            else: a("s_mov_b64 s[38:39], vcc")
        a("ds_write_b64 v6, v[20:21]")
        if j==4: a("s_mov_b64 exec, s[36:37]")
        else:
            if j==0: a("s_mov_b64 s[36:37], exec"); a("s_andn2_b64 exec, exec, s[38:39]")
            a("ds_write_b64 v7, v[22:23]")
            if j==0: a("s_mov_b64 exec, s[36:37]")
    a("s_waitcnt lgkmcnt(0)")
    a("v_lshlrev_b32 v3, 3, v1"); a("v_add_u32 v3, v3, v2")
    for j in range(8): a(f"ds_read_b64 v[{X[j][0]}:{X[j][1]}], v3 offset:{512*j}")
    a("s_waitcnt lgkmcnt(0)")
    fft512(a,1)
    a("v_lshlrev_b32 v9, 11, v8"); a("v_lshlrev_b32 v10, 1, v7"); a("v_add_u32 v9, v9, v10")
    for j in range(8):
        a(f"buffer_load_ushort v{T[j][0]}, v9, s[4:7], 0 offen offset:{128*j}"); a(f"buffer_load_ushort v{T[j][1]}, v9, s[4:7], 0 offen offset:{1024+128*j}")
    a("s_waitcnt vmcnt(0)")
    for j in range(8):
        for c in range(2):
            x=X[j][c]; t=T[j][c]
            bfr(a,x,x); a(f"v_lshlrev_b32 v{t}, 16, v{t}"); a(f"v_add_f32 v{x}, v{x}, v{t}"); a(f"v_cvt_pk_bf16_f32 v{x}, v{x}, v{x}")
            a(f"buffer_store_short v{x}, v9, s[12:15], 0 offen offset:{1024*c+128*j}"); a(f"v_lshlrev_b32 v{T[j][c]}, 16, v{x}")
    ln2rows(a,[T[j][0] for j in range(8)],[T[j][1] for j in range(8)])
    for j in range(8):
        for c in range(2):
            t=T[j][c]; a(f"v_lshrrev_b32 v{t}, 16, v{t}"); a(f"buffer_store_short v{t}, v9, s[40:43], 0 offen offset:{1024*c+128*j}")
    a.lab("K3_END"); a("s_endpgm")
    return a

def gemm(lab,which):
    a=A(); load_ptrs(a)
    if which==4:
        a("s_and_b32 s3, s2, 15"); a("s_lshr_b32 s36, s2, 4"); a("s_cmp_ge_u32 s36, 22"); a(f"s_cbranch_scc1 {lab}_END")
        srd(a,4,34,OFF_LN,2048*1024); srd(a,8,34,OFF_WG,1376*1024); srd(a,12,34,OFF_WU,1376*1024); srd(a,40,34,OFF_ACT,2048*2752)
        KS,ldA,ldB=512,1024,1024
        a("s_lshl_b32 s3, s3, 7"); a("s_lshl_b32 s36, s36, 6")
    else:
        a("s_and_b32 s3, s2, 15"); a("s_lshr_b32 s36, s2, 4"); a("s_cmp_ge_u32 s36, 8"); a(f"s_cbranch_scc1 {lab}_END")
        srd(a,4,34,OFF_ACT,2048*2752); srd(a,8,34,OFF_WD,512*2816); srd(a,12,34,OFF_H,2048*1024); srd(a,40,30,0,2048*1024)
        KS,ldA,ldB=1408,2752,2816
        a("s_lshl_b32 s3, s3, 7"); a("s_lshl_b32 s36, s36, 6")
    a("v_and_b32 v1, 63, v0"); a("v_lshrrev_b32 v2, 6, v0"); a("v_and_b32 v3, 1, v2"); a("v_lshrrev_b32 v4, 1, v2")
    a("v_lshlrev_b32 v3, 6, v3"); a("v_add_u32 v3, s3, v3")
    a("v_lshlrev_b32 v4, 5, v4"); a("v_add_u32 v4, s36, v4")
    a("v_and_b32 v5, 31, v1"); a("v_lshrrev_b32 v6, 5, v1"); a("v_lshlrev_b32 v6, 4, v6")
    a("v_add_u32 v7, v3, v5"); a(f"v_mul_u32_u24 v7, {ldA}, v7"); a("v_add_u32 v7, v7, v6"); a(f"v_add_u32 v8, {32*ldA}, v7")
    a("v_add_u32 v9, v4, v5"); a(f"v_mul_u32_u24 v9, {ldB}, v9"); a("v_add_u32 v9, v9, v6")
    KB=64; RB=KB*2; ST=RB+16; CPR=RB//16; RPL=256//CPR; NA=128//RPL
    nB=(128 if which==4 else 64)//RPL; BUF=256*ST
    for r in range(64,128): a(f"v_mov_b32 v{r}, 0")
    lg=CPR.bit_length()-1
    a(f"v_lshrrev_b32 v10, {lg}, v0"); a(f"v_and_b32 v11, {CPR-1}, v0"); a("v_lshlrev_b32 v11, 4, v11")
    a(f"v_mul_u32_u24 v12, {ST}, v10"); a("v_add_u32 v12, v12, v11")
    a("v_add_u32 v13, s3, v10"); a(f"v_mul_u32_u24 v13, {ldA}, v13"); a("v_add_u32 v13, v13, v11")
    a("v_add_u32 v14, s36, v10"); a(f"v_mul_u32_u24 v14, {ldB}, v14"); a("v_add_u32 v14, v14, v11")
    a("v_sub_u32 v7, v3, s3"); a("v_add_u32 v7, v7, v5"); a(f"v_mul_u32_u24 v7, {ST}, v7"); a("v_add_u32 v7, v7, v6")
    a("v_sub_u32 v9, v4, s36"); a("v_add_u32 v9, v9, v5"); a(f"v_mul_u32_u24 v9, {ST}, v9"); a("v_add_u32 v9, v9, v6"); a(f"v_add_u32 v9, {128*ST}, v9")
    a(f"v_add_u32 v15, {BUF}, v12"); a(f"v_add_u32 v8, {BUF}, v7"); a(f"v_add_u32 v10, {BUF}, v9")
    def gl(S=0):
        for j in range(NA): a(f"buffer_load_dwordx4 v[{16+4*j}:{19+4*j}], v13, s[4:7], s37 offen offset:{0}") if False else None
        for j in range(NA):
            a(f"s_add_u32 s38, s37, {j*RPL*ldA}"); a(f"buffer_load_dwordx4 v[{S+16+4*j}:{S+19+4*j}], v13, s[4:7], s38 offen")
        for j in range(nB):
            h=nB//2; sr="s[8:11]" if (which==5 or j<h) else "s[12:15]"; jj=j if (which==5 or j<h) else j-h
            a(f"s_add_u32 s38, s37, {jj*RPL*ldB}"); a(f"buffer_load_dwordx4 v[{S+32+4*j}:{S+35+4*j}], v14, {sr}, s38 offen")
    def sw(b,S=0):
        for j in range(NA): a(f"ds_write_b128 v{(12,15)[b]}, v[{S+16+4*j}:{S+19+4*j}] offset:{j*RPL*ST}")
        for j in range(nB): a(f"ds_write_b128 v{(12,15)[b]}, v[{S+32+4*j}:{S+35+4*j}] offset:{(128+j*RPL)*ST}")
    def comp(b):
        pa=(7,8)[b]; pb=(9,10)[b]; nk=KB//16
        def rd(ks,F):
            o=ks*32
            a(f"ds_read_b128 v[{F}:{F+3}], v{pa} offset:{o}"); a(f"ds_read_b128 v[{F+4}:{F+7}], v{pa} offset:{o+32*ST}"); a(f"ds_read_b128 v[{F+8}:{F+11}], v{pb} offset:{o}")
            if which==4: a(f"ds_read_b128 v[{F+12}:{F+15}], v{pb} offset:{o+64*ST}")
        nr=4 if which==4 else 3
        rd(0,48)
        for ks in range(nk):
            F=(48,160)[ks&1]
            if ks+1<nk: rd(ks+1,(48,160)[(ks+1)&1]); a(f"s_waitcnt lgkmcnt({nr})")
            else: a("s_waitcnt lgkmcnt(0)")
            a(f"v_mfma_f32_32x32x16_bf16 v[64:79], v[{F}:{F+3}], v[{F+8}:{F+11}], v[64:79]"); a(f"v_mfma_f32_32x32x16_bf16 v[80:95], v[{F+4}:{F+7}], v[{F+8}:{F+11}], v[80:95]")
            if which==4:
                a(f"v_mfma_f32_32x32x16_bf16 v[96:111], v[{F}:{F+3}], v[{F+12}:{F+15}], v[96:111]"); a(f"v_mfma_f32_32x32x16_bf16 v[112:127], v[{F+4}:{F+7}], v[{F+12}:{F+15}], v[112:127]")
            a.nop(1)
    nl=NA+nB; adv=f"s_add_u32 s37, s37, {RB}"
    a("s_mov_b32 s37, 0"); gl(0); a(adv); gl(112); a(f"s_waitcnt vmcnt({nl})"); sw(0,0); a("s_waitcnt lgkmcnt(0)"); a(adv); gl(0); a("s_barrier")
    a.lab(f"{lab}_L")
    for b in range(2):
        S=112*(1-b)
        comp(b); a(f"s_waitcnt vmcnt({nl})"); sw(1-b,S); a("s_waitcnt lgkmcnt(0)"); a(adv); gl(S); a("s_barrier")
        a(f"s_cmp_gt_u32 s37, {KS*2+2*RB-1}"); a(f"s_cbranch_scc1 {lab}_D")
    a(f"s_branch {lab}_L"); a.lab(f"{lab}_D"); a("s_waitcnt vmcnt(0)")
    a.nop(15); a.nop(15)
    import os
    if os.environ.get("NOEPI"): a("s_endpgm")
    a("v_add_u32 v10, v4, v5")
    a("v_lshrrev_b32 v6, 5, v1"); a("v_lshlrev_b32 v6, 2, v6"); a("v_add_u32 v6, v6, v3")
    if which==4: a("v_cmp_gt_u32 vcc, 1376, v10"); a("s_and_saveexec_b64 s[38:39], vcc")
    if which==5:
        for i in range(2):
            for r in range(16):
                row=32*i+(r>>2)*8+(r&3)
                a(f"v_add_u32 v11, {row}, v6"); a("v_lshlrev_b32 v11, 10, v11"); a("v_lshlrev_b32 v12, 1, v10"); a(f"v_add_u32 v{16+16*i+r}, v11, v12")
                a(f"buffer_load_ushort v{96+16*i+r}, v{16+16*i+r}, s[12:15], 0 offen")
        a("s_waitcnt vmcnt(0)")
    for i in range(2):
        for r in range(16):
            row=32*i+(r>>2)*8+(r&3); g=64+16*i+r; u=96+16*i+r
            if which==4:
                a(f"v_add_u32 v11, {row}, v6")
                a("v_mul_u32_u24 v11, 2752, v11"); a("v_lshlrev_b32 v12, 1, v10"); a("v_add_u32 v11, v11, v12")
                bfr(a,g,g); bfr(a,u,u)
                a(f"v_mul_f32 v13, v{g}, v{g}"); a("v_mul_f32 v13, 0x3d372713, v13"); a(f"v_fma_f32 v13, v13, v{g}, v{g}")
                a("v_mul_f32 v13, 0x40135761, v13"); a("v_exp_f32 v13, v13"); a.nop(0); a("v_add_f32 v13, 1.0, v13"); a("v_rcp_f32 v13, v13"); a.nop(0)
                a(f"v_fma_f32 v13, -v13, v{g}, v{g}"); bfr(a,13,13); a(f"v_mul_f32 v{g}, v13, v{u}"); a(f"v_cvt_pk_bf16_f32 v{g}, v{g}, v{g}")
                a(f"buffer_store_short v{g}, v11, s[40:43], 0 offen")
            else:
                bfr(a,g,g); a(f"v_lshlrev_b32 v{u}, 16, v{u}")
                a(f"v_add_f32 v{g}, v{u}, v{g}"); a(f"v_cvt_pk_bf16_f32 v{g}, v{g}, v{g}"); a(f"buffer_store_short v{g}, v{16+16*i+r}, s[40:43], 0 offen")
    a.lab(f"{lab}_END"); a("s_endpgm")
    return a

ks=[("k1_kernel",K1(),(256+132,1,1),18432,80),("k2_kernel",K2(),(257,1,1),32768,96),("k3_kernel",K3(),(256,1,1),18432,80),
    ("k4_kernel",gemm("K4",4),(352,1,1),73728,176),("k5_kernel",gemm("K5",5),(128,1,1),73728,176)]
out="; generated\n"
for n,_,g,l,_ in ks: out+=f"; @launch kernel={n} grid=({g[0]},{g[1]},{g[2]}) block=(256,1,1) lds={l}\n"
out+='.amdgcn_target "amdgcn-amd-amdhsa--gfx950"\n.text\n'
for n,k,_,_,_ in ks: out+=f".globl {n}\n.p2align 8\n.type {n},@function\n{n}:\n"+k.txt()
out+='.section .rodata,"a"\n'
for n,_,_,_,nv in ks:
    out+=f".p2align 6\n.amdhsa_kernel {n}\n  .amdhsa_next_free_vgpr {nv}\n  .amdhsa_next_free_sgpr 48\n  .amdhsa_accum_offset {nv}\n  .amdhsa_group_segment_fixed_size 0\n  .amdhsa_kernarg_size 80\n  .amdhsa_user_sgpr_count 2\n  .amdhsa_user_sgpr_kernarg_segment_ptr 1\n  .amdhsa_system_sgpr_workgroup_id_x 1\n.end_amdhsa_kernel\n"
open(f"cdna_kernels/{NAME}.s","w").write(out)
```
